```python
import torch

def _softmax(x, axis=-1):
    return torch.softmax(x, dim=axis)
def _gelu(x):
    return torch.nn.functional.gelu(x, approximate="tanh")
def _silu(x):
    return torch.nn.functional.silu(x)
def _sigmoid(x):
    return torch.sigmoid(x)
def _layernorm(x, axis=-1, eps=1e-5):
    m = x.mean(dim=axis, keepdim=True)
    v = x.var(dim=axis, keepdim=True, unbiased=False)
    return (x - m) / torch.sqrt(v + eps)
def _scatter_add(tgt, idx, src, axis=0):
    return tgt.clone().index_add_(axis, idx, src)
def _segment_sum(src, seg, n):
    out = torch.zeros((n,) + src.shape[1:], dtype=src.dtype)
    return out.index_add_(0, seg, src)
def _pad(x, pw):
    flat = tuple(v for pair in reversed(pw) for v in pair)
    return torch.nn.functional.pad(x, flat)

kernel_name = 'sequential_preLN__ssm_conv_h3__glu_gated_bilinear__prompt'

def setup_inputs():

    _w = (lambda a: (lambda t: t.to(torch.bfloat16) if t.is_floating_point() else t)(torch.as_tensor(a)))
    def _A_setup():
        B, S, D = 1, 2048, 640
        ks = 4
        return {
            "q": _w((lambda *s: torch.randn(*s, dtype=torch.bfloat16) * 0.05)(B, S, D)),
            "k": _w((lambda *s: torch.randn(*s, dtype=torch.bfloat16) * 0.2)(B, S, D)),
            "v": _w((lambda *s: torch.randn(*s, dtype=torch.bfloat16) * 0.2)(B, S, D)),
            "shift_k": _w((lambda *s: torch.randn(*s, dtype=torch.bfloat16) * 0.2)(D, ks) * 0.5),
            "ssm_k": _w((lambda *s: torch.randn(*s, dtype=torch.bfloat16) * 0.4)(D, S) * (1.0 / S ** 0.5)),
            "ssm_D": _w((lambda *s: torch.randn(*s, dtype=torch.bfloat16) * 0.2)(D)),
        }
    _A_in = _A_setup()

    def _B_setup():
        B, S, D, F = 1, 2048, 640, 1536
        return {
            "x": _w((lambda *s: torch.randn(*s, dtype=torch.bfloat16) * 0.05)(B, S, D)),
            "w_gate": _w((lambda *s: torch.randn(*s, dtype=torch.bfloat16) * 0.2)(D, F) * (D ** -0.5)),
            "w_up": _w((lambda *s: torch.randn(*s, dtype=torch.bfloat16) * 0.2)(D, F) * (D ** -0.5)),
            "w_down": _w((lambda *s: torch.randn(*s, dtype=torch.bfloat16) * 0.2)(F, D) * (F ** -0.5)),
        }
    _B_in = _B_setup()

    return {
        "A_q": _A_in["q"],
        "A_k": _A_in["k"],
        "A_v": _A_in["v"],
        "A_shift_k": _A_in["shift_k"],
        "A_ssm_k": _A_in["ssm_k"],
        "A_ssm_D": _A_in["ssm_D"],
        "B_x": _B_in["x"],
        "B_w_gate": _B_in["w_gate"],
        "B_w_up": _B_in["w_up"],
        "B_w_down": _B_in["w_down"],
    }

def reference(A_q, A_k, A_v, A_shift_k, A_ssm_k, A_ssm_D, B_x, B_w_gate, B_w_up, B_w_down):
    def _A_ref(q, k, v, shift_k, ssm_k, ssm_D):
        B, S, D = q.shape
        ks = shift_k.shape[-1]
        k_pad = _pad(k, ((0, 0), (ks - 1, 0), (0, 0)))
        k_shift = torch.zeros_like(k)
        for t in range(ks):
            k_shift = k_shift + k_pad[:, t:t + S, :] * shift_k[:, ks - 1 - t][None, None, :]
        kv = k_shift * v
        L = 2 * S
        kv_pad = _pad(kv, ((0, 0), (0, S), (0, 0)))
        kf_pad = _pad(ssm_k, ((0, 0), (0, S)))
        kv_f = (lambda x, axes=(-2,-1): torch.fft.rfft2(x.float(), dim=axes))(kv_pad[:, None, :, :], axes=(1, 2))
        kf_f = (lambda x, axes=(-2,-1): torch.fft.rfft2(x.float(), dim=axes))(kf_pad[:, None, :], axes=(1, 2))
        kf_f = (lambda x, *d: x.permute(*d))(kf_f, 1, 2, 0)
        y_f = kv_f * kf_f[None, :, :, :]
        y = (lambda x, s, axes=(-2,-1): torch.fft.irfft2(x, s=s, dim=axes).to(torch.bfloat16))(y_f, (1, L), axes=(1, 2))[:, 0, :S, :]
        y = y + kv * ssm_D[None, None, :]
        return q * y

    def _B_ref(x, w_gate, w_up, w_down):
        g = torch.einsum("bsd,df->bsf", x, w_gate)
        u = torch.einsum("bsd,df->bsf", x, w_up)
        h = g * u
        return torch.einsum("bsf,fd->bsd", h, w_down)

    x = A_q
    h = x + _A_ref(_layernorm(x, axis=-1), A_k, A_v, A_shift_k, A_ssm_k, A_ssm_D)
    h2 = h + _B_ref(_layernorm(h, axis=-1), B_w_gate, B_w_up, B_w_down)
    return h2
```

```python
NAME = "sequential_preLN__ssm_conv_h3__glu_gated_bilinear__prompt"
HEADER = open("cdna_kernels/" + NAME + ".s.ref").read().split("; Override launch")[0]

class Kern:
    def __init__(self, name, grid, block, lds, vgpr=256, sgpr=102, agpr=0, wgy=False):
        self.name, self.grid, self.block, self.lds = name, grid, block, lds
        self.vgpr, self.sgpr, self.agpr = vgpr, sgpr, agpr
        self.lines = []
        self.uid = 0
        self.wgy = wgy
    def e(self, s):
        for l in s.strip("\n").split("\n"):
            l = l.strip()
            if l: self.lines.append(("" if l.endswith(":") else "    ") + l)
    __call__ = e
    def label(self, base):
        self.uid += 1
        return f"L_{self.name[:6]}_{base}_{self.uid}"
    def srd(self, d, base, nbytes):
        if d != base:
            self.e(f"s_mov_b32 s{d}, s{base}\ns_mov_b32 s{d+1}, s{base+1}")
        self.e(f"s_mov_b32 s{d+2}, {nbytes}\ns_mov_b32 s{d+3}, 0x00020000")
    def text(self):
        o = [f".globl {self.name}", ".p2align 8", f".type {self.name},@function", f"{self.name}:"] + self.lines
        return "\n".join(o) + "\n"
    def desc(self):
        acc = (self.vgpr + 3) // 4 * 4
        tot = acc + self.agpr if self.agpr else self.vgpr
        o = [".p2align 6", f".amdhsa_kernel {self.name}",
             f"  .amdhsa_next_free_vgpr {tot}", f"  .amdhsa_next_free_sgpr {self.sgpr}",
             f"  .amdhsa_accum_offset {acc}", "  .amdhsa_group_segment_fixed_size 0",
             "  .amdhsa_kernarg_size 104", "  .amdhsa_user_sgpr_count 2",
             "  .amdhsa_user_sgpr_kernarg_segment_ptr 1", "  .amdhsa_system_sgpr_workgroup_id_x 1"]
        if self.wgy: o.append("  .amdhsa_system_sgpr_workgroup_id_y 1")
        o += ["  .amdhsa_float_denorm_mode_32 3", "  .amdhsa_float_denorm_mode_16_64 3", ".end_amdhsa_kernel"]
        return "\n".join(o) + "\n"

def build_file(kerns, launches=None):
    launches = launches or kerns
    o = HEADER
    for k in launches:
        o += f"; @launch kernel={k.name} grid=({k.grid[0]},{k.grid[1]},{k.grid[2]}) block=({k.block},1,1) lds={k.lds}\n"
    o += '.amdgcn_target "amdgcn-amd-amdhsa--gfx950"\n.text\n'
    for k in kerns: o += k.text()
    o += '.section .rodata,"a"\n'
    for k in kerns: o += k.desc()
    return o

def vr(a, n=1):
    return f"v{a}" if n == 1 else f"v[{a}:{a+n-1}]"
def sr(a, n=1):
    return f"s{a}" if n == 1 else f"s[{a}:{a+n-1}]"
def ar(a, n=1):
    return f"a{a}" if n == 1 else f"a[{a}:{a+n-1}]"

import os
PROF = int(os.environ.get("PROF","0"))
WS_PROF = 0x1800000
class Prof:
    def __init__(self, k, kid, wpw):
        self.k, self.kid, self.wpw = k, kid, wpw
        if PROF: k.sgpr = 102
    def start(self):
        if not PROF: return
        self.k("s_memrealtime s[64:65]\ns_memtime s[68:69]\ns_load_dwordx2 s[96:97], s[0:1], 96\nv_lshrrev_b32 v1, 6, v0\ns_nop 1\nv_readfirstlane_b32 s98, v1\ns_mov_b32 s99, s2")
        for i in range(1,14): self.k(f"s_mov_b32 s{68+2*i}, 0")
    def stamp(self, i, grp=1):
        if PROF!=grp: return
        self.k(f"s_memtime s[{68+2*i}:{69+2*i}]")
    def end(self):
        if not PROF: return
        k=self.k
        k(f"""s_waitcnt vmcnt(0)
        s_memrealtime s[66:67]
        s_memtime s[94:95]
        s_waitcnt lgkmcnt(0)
        s_mul_i32 s99, s99, {self.wpw}
        s_add_u32 s99, s99, s98
        s_lshl_b32 s99, s99, 6
        s_add_u32 s99, s99, {WS_PROF + self.kid*0x40000}
        s_add_u32 s96, s96, s99
        s_addc_u32 s97, s97, 0
        s_mov_b32 s98, 64
        s_mov_b32 s99, 0x00020000
        s_mov_b64 exec, 1
        v_mov_b32 v0, 0
        v_mov_b32 v2, s64
        v_mov_b32 v3, s66
        buffer_store_dwordx2 v[2:3], v0, s[96:99], 0 offen""")
        for i in range(14):
            k(f"v_mov_b32 v2, s{68+2*i}\nbuffer_store_dword v2, v0, s[96:99], 0 offen offset:{8+4*i}\ns_nop 0")
        k("s_waitcnt vmcnt(0)")
```

```python
from asmgen import *
WS_KVT=0; WS_QT=0x280000; WS_A=0x500000; WS_B=0x502000; WS_HT=0x600000
WS_WGU=0x900000; WS_WD=0xD00000; WS_HH=0x1000000; WS_RS=0x1700000
NB_ACT=2048*1280

def dpp_allreduce16(k, v, tmp=None):
    for r in (8,4,2,1):
        k(f"s_nop 1\nv_add_f32_dpp v{v}, v{v}, v{v} row_ror:{r} row_mask:0xf bank_mask:0xf")

def k0():
    k = Kern("k0_prep_kernel", (288,1,1), 256, 0, vgpr=128, sgpr=48)
    P=Prof(k,0,4)
    k("s_cmp_ge_u32 s2, 288\ns_cbranch_scc1 K0_END"); P.start()
    k("""
    s_load_dwordx4 s[4:7], s[0:1], 0
    s_load_dwordx4 s[8:11], s[0:1], 16
    s_load_dwordx2 s[12:13], s[0:1], 96
    v_and_b32 v1, 15, v0
    v_lshrrev_b32 v2, 4, v0
    s_cmp_ge_u32 s2, 160
    s_cbranch_scc1 K0_STATS
    """)
    k("""
    s_and_b32 s3, s2, 15
    s_lshr_b32 s14, s2, 4
    s_mul_i32 s15, s3, 128*1280
    s_lshl_b32 s36, s14, 7
    s_add_u32 s15, s15, s36
    v_mul_u32_u24 v3, 8*1280, v2
    v_lshlrev_b32 v4, 3, v1
    v_add3_u32 v3, v3, v4, s15
    v_add_u32 v4, 4*1280, v3
    v_subrev_u32 v5, 3*1280, v3
    s_lshl_b32 s36, s14, 9
    v_lshlrev_b32 v6, 5, v1
    v_add_u32 v6, s36, v6
    s_waitcnt lgkmcnt(0)
    """)
    k.srd(16,4,NB_ACT); k.srd(20,6,NB_ACT); k.srd(24,8,NB_ACT); k.srd(28,10,640*8); k.srd(32,12,0x500000)
    KR=8; VR=30; QR=46; SH=62
    k(f"buffer_load_dwordx4 v[{SH}:{SH+3}], v6, s[28:31], 0 offen")
    k(f"buffer_load_dwordx4 v[{SH+4}:{SH+7}], v6, s[28:31], 0 offen offset:16")
    def rowaddr(r):
        if r < 0: return "v5", (r+3)*1280
        if r < 4: return "v3", r*1280
        return "v4", (r-4)*1280
    for r in range(-3,8):
        a,o = rowaddr(r); k(f"buffer_load_dwordx2 v[{KR+2*(r+3)}:{KR+2*(r+3)+1}], {a}, s[20:23], 0 offen offset:{o}")
    for r in range(8):
        a,o = rowaddr(r); k(f"buffer_load_dwordx2 v[{VR+2*r}:{VR+2*r+1}], {a}, s[24:27], 0 offen offset:{o}")
    for r in range(8):
        a,o = rowaddr(r); k(f"buffer_load_dwordx2 v[{QR+2*r}:{QR+2*r+1}], {a}, s[16:19], 0 offen offset:{o}")
    k(f"""
    s_lshl_b32 s36, s14, 18
    s_lshl_b32 s37, s3, 8
    s_add_u32 s36, s36, s37
    v_lshlrev_b32 v6, 14, v1
    v_lshlrev_b32 v7, 4, v2
    v_add3_u32 v6, v6, v7, s36
    v_add_u32 v7, 0x2000, v6
    s_mov_b32 s38, 0xffff0000
    s_mov_b32 s39, {WS_QT}
    s_mov_b32 s40, 0x05040100
    s_mov_b32 s41, 0x07060302
    """)
    CF=70
    KF=86
    P.stamp(1); k("s_waitcnt vmcnt(27)"); P.stamp(2)
    for c in range(4):
        for j in range(4):
            src = SH + 2*c + (j>>1)
            if j&1: k(f"v_and_b32 v{CF+4*j+c}, s38, v{src}")
            else:   k(f"v_lshlrev_b32 v{CF+4*j+c}, 16, v{src}")
    AC=108;
    k("s_waitcnt vmcnt(16)"); P.stamp(3)
    for p in range(2):
        for r in range(11):
            k(f"v_lshlrev_b32 v{KF+2*r}, 16, v{KR+2*r+p}\nv_and_b32 v{KF+2*r+1}, s38, v{KR+2*r+p}")
        for r in range(8):
            for j in range(4):
                a = KF+2*(r+3-j); c = CF+4*j+2*p; d = AC+2*r
                if j==0: k(f"v_pk_mul_f32 v[{d}:{d+1}], v[{a}:{a+1}], v[{c}:{c+1}]")
                else:    k(f"v_pk_fma_f32 v[{d}:{d+1}], v[{a}:{a+1}], v[{c}:{c+1}], v[{d}:{d+1}]")
        if p==0: k("s_waitcnt vmcnt(8)")
        for r in range(8):
            k(f"v_lshlrev_b32 v{KF+2*r}, 16, v{VR+2*r+p}\nv_and_b32 v{KF+2*r+1}, s38, v{VR+2*r+p}")
        for r in range(8):
            d=AC+2*r; a=KF+2*r
            k(f"v_pk_mul_f32 v[{d}:{d+1}], v[{d}:{d+1}], v[{a}:{a+1}]")
        for h in range(2):
            o = SH+4*h
            for m in range(4):
                k(f"v_cvt_pk_bf16_f32 v{o+m}, v{AC+2*(7-2*m)+h}, v{AC+2*(6-2*m)+h}")
            c = 2*p+h
            ad = "v6" if c<2 else "v7"
            if c&1: k(f"s_mov_b32 s42, 4096\nbuffer_store_dwordx4 v[{o}:{o+3}], {ad}, s[32:35], s42 offen")
            else:   k(f"buffer_store_dwordx4 v[{o}:{o+3}], {ad}, s[32:35], 0 offen")
        if p==0: k("s_nop 1")
    k(f"s_waitcnt vmcnt(4)\ns_add_u32 s42, s39, 4096")
    for c in range(4):
        o = KF+4*c
        for m in range(4):
            k(f"v_perm_b32 v{o+m}, v{QR+2*(2*m+1)+(c>>1)}, v{QR+2*(2*m)+(c>>1)}, s{41 if c&1 else 40}")
        ad = "v6" if c<2 else "v7"
        k(f"buffer_store_dwordx4 v[{o}:{o+3}], {ad}, s[32:35], s{42 if c&1 else 39} offen")
    P.stamp(4); P.end(); k("s_endpgm")
    k("""
    K0_STATS:
    s_sub_u32 s3, s2, 160
    s_lshl_b32 s3, s3, 4
    v_add_u32 v2, s3, v2
    v_mul_u32_u24 v3, 1280, v2
    v_lshlrev_b32 v4, 4, v1
    v_add_u32 v3, v3, v4
    s_mov_b32 s38, 0xffff0000
    s_waitcnt lgkmcnt(0)
    """)
    k.srd(16,4,NB_ACT)
    k(f"s_add_u32 s12, s12, {WS_A}\ns_addc_u32 s13, s13, 0")
    k.srd(32,12,0x4000)
    for i in range(5):
        k(f"buffer_load_dwordx4 v[{8+4*i}:{11+4*i}], v3, s[16:19], 0 offen offset:{256*i}")
    X=32
    for i in range(5):
        k(f"s_waitcnt vmcnt({4-i})")
        for j in range(4):
            s=8+4*i+j; d=X+2*(4*i+j)
            k(f"v_lshlrev_b32 v{d}, 16, v{s}\nv_and_b32 v{d+1}, s38, v{s}")
    k(f"v_pk_add_f32 v[4:5], v[{X}:{X+1}], v[{X+2}:{X+3}]")
    k(f"v_pk_add_f32 v[6:7], v[{X+4}:{X+5}], v[{X+6}:{X+7}]")
    for i in range(4,20,2):
        k(f"v_pk_add_f32 v[4:5], v[4:5], v[{X+2*i}:{X+2*i+1}]")
        k(f"v_pk_add_f32 v[6:7], v[6:7], v[{X+2*i+2}:{X+2*i+3}]")
    k("v_pk_add_f32 v[4:5], v[4:5], v[6:7]\nv_add_f32 v4, v4, v5")
    dpp_allreduce16(k,4)
    k(f"v_mul_f32 v4, {hex(f2u(-1.0/640))}, v4\nv_mov_b32 v5, v4")
    for i in range(20):
        k(f"v_pk_add_f32 v[{X+2*i}:{X+2*i+1}], v[{X+2*i}:{X+2*i+1}], v[4:5]")
    k(f"v_pk_mul_f32 v[8:9], v[{X}:{X+1}], v[{X}:{X+1}]")
    k(f"v_pk_mul_f32 v[6:7], v[{X+2}:{X+3}], v[{X+2}:{X+3}]")
    for i in range(2,20,2):
        k(f"v_pk_fma_f32 v[8:9], v[{X+2*i}:{X+2*i+1}], v[{X+2*i}:{X+2*i+1}], v[8:9]")
        k(f"v_pk_fma_f32 v[6:7], v[{X+2*i+2}:{X+2*i+3}], v[{X+2*i+2}:{X+2*i+3}], v[6:7]")
    k("v_pk_add_f32 v[6:7], v[8:9], v[6:7]\nv_add_f32 v6, v6, v7")
    dpp_allreduce16(k,6)
    k(f"""
    v_mov_b32 v7, {hex(f2u(1e-5))}
    v_fmac_f32 v7, {hex(f2u(1.0/640))}, v6
    v_rsq_f32 v7, v7
    v_lshlrev_b32 v2, 2, v2
    v_cmp_eq_u32 vcc, 0, v1
    v_mul_f32 v4, v4, v7
    s_and_saveexec_b64 s[36:37], vcc
    s_mov_b32 s3, {WS_B-WS_A}
    buffer_store_dword v7, v2, s[32:35], 0 offen
    buffer_store_dword v4, v2, s[32:35], s3 offen
    """)
    P.end()
    k("K0_END:\ns_endpgm")
    return k

import struct
def f2u(f): return struct.unpack("<I", struct.pack("<f", f))[0]
```

```python
from asmgen import *
from g0 import *

class Cnt:
    def __init__(self, k, name, maxv):
        self.k, self.name, self.maxv = k, name, maxv
        self.n = 0; self.tags = {}; self.done = 0
    def issue(self, tag=None):
        self.n += 1
        if tag is not None: self.tags[tag] = self.n
    def need(self, tag):
        pos = self.tags[tag]
        if pos <= self.done: return None
        c = min(self.n - pos, self.maxv)
        self.done = self.n - c
        return f"s_waitcnt {self.name}({c})"
    def wait(self, tag):
        s = self.need(tag)
        if s: self.k(s)

WAVE_LDS = 4*4160 + 4608
def conv_body(k,P):
    ACC=16; RING=48; QR=176; AR=192; BR=224; FD=12
    k(f"""
    v_lshrrev_b32 v1, 6, v0
    v_and_b32 v0, 63, v0
    v_readfirstlane_b32 s3, v1
    v_lshlrev_b32 v3, 4, v0
    v_add_u32 v8, 2, v3
    v_add_u32 v9, 4, v3
    v_add_u32 v10, 6, v3
    s_lshl_b32 s14, s2, 2
    s_add_u32 s14, s14, s3
    s_mul_i32 s15, s3, {WAVE_LDS}
    s_lshl_b32 s36, s14, 12
    s_add_u32 s40, s15, 32
    s_add_u32 s41, s15, {4160+32}
    s_add_u32 s42, s15, {2*4160+32}
    s_add_u32 s43, s15, {3*4160+32}
    s_add_u32 s44, s15, {4*4160+512}
    s_lshr_b32 s37, s14, 1
    s_lshl_b32 s37, s37, 2
    s_waitcnt lgkmcnt(0)
    s_load_dword s38, s[6:7], s37
    s_add_u32 s4, s4, s36
    s_addc_u32 s5, s5, 0
    s_add_u32 s16, s12, s36
    s_addc_u32 s17, s13, 0
    """)
    P.stamp(1)
    k.srd(16,16,4096); k.srd(20,4,4096); k.srd(24,4,4094)
    vm = Cnt(k,"vmcnt",63); lg = Cnt(k,"lgkmcnt",15)
    def dma(i):
        k(f"s_mov_b32 m0, s44\ns_nop 0\nbuffer_load_dwordx4 v3, s[16:19], 0 offen offset:{1024*i} lds"); vm.issue()
        for c in range(4):
            va = ["v3","v8","v9","v10"][c]
            if os.environ.get("ALN")=="1": va="v3"
            if os.environ.get("ALN")=="2": va=["v3","v9","v9","v3"][c]
            s = "s[24:27]" if c&1 else "s[20:23]"
            k(f"s_mov_b32 m0, s{40+c}\ns_nop 0\nbuffer_load_dwordx4 {va}, {s}, 0 offen offset:{1024*i} lds"); vm.issue(f"P{i}" if c==3 else None)
    dma(0); P.stamp(2); dma(1); P.stamp(3)
    k(f"""
    v_and_b32 v6, 15, v0
    v_lshrrev_b32 v7, 4, v0
    v_lshlrev_b32 v4, 5, v6
    v_lshl_add_u32 v4, v7, 3, v4
    v_lshlrev_b32 v5, 1, v4
    s_add_u32 s28, s16, {WS_QT}
    s_addc_u32 s29, s17, 0
    s_add_u32 s32, s12, {WS_A}
    s_addc_u32 s33, s13, 0
    """)
    k.srd(28,28,4096); k.srd(32,32,0x4000)
    dma(2); dma(3); P.stamp(4)
    for t in range(8):
        k(f"buffer_load_dwordx2 v[{QR+2*t}:{QR+2*t+1}], v4, s[28:31], 0 offen offset:{512*t}"); vm.issue()
    P.stamp(5)
    k(f"s_mov_b32 s45, 4096\ns_mov_b32 s46, 8192\ns_mov_b32 s47, {8192+4096}")
    for t in range(8):
        so = "0" if t<4 else "s45"
        k(f"buffer_load_dwordx4 v[{AR+4*t}:{AR+4*t+3}], v5, s[32:35], {so} offen offset:{1024*(t&3)}"); vm.issue()
        so = "s46" if t<4 else "s47"
        k(f"buffer_load_dwordx4 v[{BR+4*t}:{BR+4*t+3}], v5, s[32:35], {so} offen offset:{1024*(t&3)}"); vm.issue(f"E{t}")
    P.stamp(6)
    k(f"""
    s_add_u32 s28, s16, {WS_HT}
    s_addc_u32 s29, s17, 0
    v_mov_b32 v8, 0
    v_mov_b32 v9, 0
    v_lshlrev_b32 v10, 3, v0
    v_add_u32 v10, s15, v10
    ds_write_b64 v10, v[8:9] offset:{4*4160}
    s_mov_b64 exec, 15
    ds_write_b64 v10, v[8:9]
    s_mov_b64 exec, -1
    v_add_u32 v1, 1, v6
    v_and_b32 v1, 3, v1
    v_sub_u32 v2, v6, v1
    v_lshlrev_b32 v8, 3, v7
    v_sub_u32 v2, v2, v8
    v_add_u32 v2, 25, v2
    v_lshlrev_b32 v2, 1, v2
    v_mul_u32_u24 v1, 4160, v1
    v_add3_u32 v1, v1, v2, s15
    v_sub_u32 v11, v6, v8
    v_add_u32 v11, 25, v11
    v_lshlrev_b32 v11, 1, v11
    v_add_u32 v11, s15, v11
    v_lshlrev_b32 v2, 5, v6
    v_lshl_add_u32 v2, v7, 4, v2
    s_add_u32 s36, s15, {4*4160+32}
    v_add_u32 v2, s36, v2
    s_waitcnt lgkmcnt(0)
    s_and_b32 s37, s14, 1
    s_lshl_b32 s37, s37, 4
    s_lshr_b32 s38, s38, s37
    s_and_b32 s38, s38, 0xffff
    v_sub_u32 v8, v8, v6
    v_subrev_u32 v8, 9, v8
    v_and_b32 v9, 1, v8
    v_lshlrev_b32 v9, 4, v9
    v_lshlrev_b32 v9, v9, s38
    v_ashrrev_i32 v8, 1, v8
    s_mov_b32 s39, 0xffff0000
    """)
    for m in range(4):
        k(f"v_cmp_eq_u32 vcc, {m}, v8\ns_nop 1\nv_cndmask_b32 v{FD+m}, 0, v9, vcc")
    for i in range(32): k(f"v_mov_b32 v{ACC+i}, 0")
    loc = {}
    for p in range(4):
        loc[("F",p)] = ("a", 32*p); loc[("G",p)] = ("a", 128+32*p)
    ring = {("G",4):0,("F",4):1,("G",5):2,("F",5):3,("G",6):0,("F",6):1,("G",7):2,("F",7):3}
    for kk,v in ring.items(): loc[kk] = ("v", RING+32*v)
    def reg(kind, blk, fr, lo=0, n=4):
        f,b = loc[(kind,blk)]
        return f"{f}[{b+4*fr+lo}:{b+4*fr+lo+n-1}]"
    def reads(kind, blk, order=None):
        o=[]
        if kind=="G":
            for fr in (range(7,-1,-1)):
                o.append((f"ds_read_b128 {reg('G',blk,fr)}, v2 offset:{64*(8*blk+fr)}", ("G",blk,fr)))
        else:
            for fr in range(8):
                u=8*blk+fr
                if u==0:
                    o.append((f"ds_read_b128 {reg('F',0,0)}, v11", ("F",0,0)))
                else:
                    o.append((f"ds_read_b64 {reg('F',blk,fr,0,2)}, v1 offset:{64*u}", None))
                    o.append((f"ds_read_b64 {reg('F',blk,fr,2,2)}, v1 offset:{64*u+8}", ("F",blk,fr)))
        return o
    def inter(a,b):
        o=[]; gi=0
        for x in b:
            o.append(x)
            if x[1] is not None: o.append(a[gi]); gi+=1
        return o
    def epi(t):
        o=[]
        q=QR+2*t; A=AR+4*t; B=BR+4*t; Y=ACC+4*t
        o.append(("vm",f"E{t}"))
        for r in range(4):
            tq = 8+(r&1)
            if r&1: o.append(f"v_and_b32 v{tq}, s39, v{q+(r>>1)}")
            else:   o.append(f"v_lshlrev_b32 v{tq}, 16, v{q+(r>>1)}")
            o.append(f"v_fma_f32 v{A+r}, v{tq}, v{A+r}, v{B+r}")
            o.append(f"v_fma_f32 v{A+r}, v{A+r}, v{Y+r}, v{tq}")
        o.append(f"v_cvt_pk_bf16_f32 v{B}, v{A}, v{A+1}")
        o.append(f"v_cvt_pk_bf16_f32 v{B+1}, v{A+2}, v{A+3}")
        o.append(f"buffer_store_dwordx2 v[{B}:{B+1}], v4, s[28:31], 0 offen offset:{512*t}")
        return o
    blocks = [(0,0),(0,1),(1,0),(0,2),(1,1),(2,0),(0,3),(1,2),(2,1),(3,0),
              (1,3),(2,2),(3,1),(2,3),(3,2),(3,3),
              (0,4),(1,4),(2,4),(3,4),(4,0),(4,1),(4,2),(4,3),
              (0,5),(1,5),(2,5),(5,0),(5,1),(5,2),(0,6),(1,6),(6,0),(6,1),(0,7),(7,0)]
    plan = {i:[] for i in range(len(blocks)+1)}
    plan[0] = [("vm","P0")] + reads("G",1) + reads("F",1)
    plan[1] = [("vm","P1")] + reads("G",2) + reads("F",2)
    plan[3] = reads("G",3) + reads("F",3)
    plan[6] = [("vm","P2")] + reads("G",4) + reads("F",4)
    plan[9] = reads("G",5) + reads("F",5)
    plan[11] = epi(0) + epi(1)
    plan[13] = epi(2) + epi(3)
    plan[20] = [("vm","P3")] + reads("G",6)
    plan[22] = epi(4)
    plan[24] = reads("F",6)
    plan[27] = reads("G",7)
    plan[29] = epi(5)
    plan[30] = reads("F",7)
    plan[34] = epi(6)
    fq=[]
    STB={1:9,10:10}
    def pop_filler(n):
        while n>0 and fq:
            x=fq.pop(0)
            if isinstance(x,tuple) and x[0]=="vm":
                vm.wait(x[1]); continue
            if isinstance(x,tuple):
                k(x[0]); lg.issue(x[1])
            else:
                k(x)
                if x.startswith("buffer_store"): vm.issue()
            n-=1
    P.stamp(7); vm.wait("P0"); P.stamp(8)
    lg.n=0
    for x in inter(reads("G",0), reads("F",0)):
        k(x[0]); lg.issue(x[1])
    for bi,(p,q) in enumerate(blocks):
        fq += plan[bi]
        if bi in STB: P.stamp(STB[bi])
        Y=ACC+4*(p+q)
        for r in range(8):
            for tag in (("F",p,r),("G",q,7-r)):
                while tag not in lg.tags: pop_filler(1)
                lg.wait(tag)
            k(f"v_mfma_f32_16x16x32_bf16 v[{Y}:{Y+3}], {reg('F',p,r)}, {reg('G',q,7-r)}, v[{Y}:{Y+3}]")
            if r==0 and p==0:
                k(f"v_mfma_f32_16x16x32_bf16 v[{Y}:{Y+3}], v[{FD}:{FD+3}], {reg('G',q,7)}, v[{Y}:{Y+3}]")
            pop_filler(2)
    pop_filler(1000)
    k("s_nop 7\ns_nop 1")
    fq += epi(7)
    pop_filler(1000)
    P.stamp(11); P.end()
    k("s_endpgm")

def k1():
    k = Kern("k1_conv_kernel", (256,1,1), 256, 4*WAVE_LDS, vgpr=256, agpr=256, sgpr=64)
    P=Prof(k,1,4)
    k("s_cmp_ge_u32 s2, 256\ns_cbranch_scc1 K1_END"); P.start()
    k("""
    s_load_dwordx4 s[4:7], s[0:1], 32
    s_load_dwordx2 s[12:13], s[0:1], 96
    s_cmp_ge_u32 s2, 160
    s_cbranch_scc1 K1_OTHER
    """)
    conv_body(k,P)
    k("K1_OTHER:")
    try:
        from g1r import repack
        repack(k,P)
    except ImportError:
        pass
    k("K1_END:\ns_endpgm")
    return k
```

```python
from asmgen import *
from g0 import *
def repack(k,P):
    L1=0; WST=80; LD=640*WST
    k(f"""
    s_load_dwordx4 s[40:43], s[0:1], 56
    s_load_dwordx2 s[8:9], s[0:1], 72
    s_sub_u32 s14, s2, 160
    v_lshrrev_b32 v1, 6, v0
    v_and_b32 v0, 63, v0
    v_readfirstlane_b32 s3, v1
    s_and_b32 s15, s14, 7
    s_lshr_b32 s16, s14, 3
    s_mul_i32 s17, s15, 12
    s_add_u32 s17, s17, s16
    s_lshl_b32 s18, s17, 5
    s_and_b32 s19, s3, 1
    s_lshl_b32 s19, s19, 4
    s_add_u32 s18, s18, s19
    v_mul_u32_u24 v2, 3072, v0
    v_add_u32 v2, s18, v2
    s_waitcnt lgkmcnt(0)
    s_cmp_ge_u32 s3, 2
    s_cselect_b32 s40, s42, s40
    s_cselect_b32 s41, s43, s41
    """)
    k.srd(20,40,640*3072); k.srd(24,8,1536*1280)
    R=16
    for i in range(10):
        k(f"s_mov_b32 s19, {i*64*3072}\nbuffer_load_dwordx4 v[{R+4*i}:{R+4*i+3}], v2, s[20:23], s19 offen")
    k(f"""
    s_lshr_b32 s28, s14, 1
    s_and_b32 s29, s14, 1
    s_lshl_b32 s30, s28, 5
    s_lshl_b32 s31, s3, 3
    s_add_u32 s30, s30, s31
    s_mul_i32 s30, s30, 1280
    s_mul_i32 s31, s29, 640
    s_add_u32 s30, s30, s31
    s_mul_i32 s31, s3, 5120
    s_add_u32 s31, s31, {LD}
    s_mov_b32 m0, s31
    v_lshlrev_b32 v3, 4, v0
    """)
    for i in range(5):
        k(f"""v_add_u32 v4, {64*i}, v0
        v_mul_u32_u24 v4, 205, v4
        v_lshrrev_b32 v4, 13, v4
        v_mul_u32_u24 v4, 640, v4
        v_add_u32 v{5+i}, v4, v3""")
    for i in range(4):
        k(f"buffer_load_dwordx4 v{5+i}, s[24:27], s30 offen offset:{1024*i} lds")
    k(f"s_add_u32 s31, s31, 4096\ns_add_u32 s30, s30, 4096\ns_mov_b32 m0, s31\ns_nop 0\nbuffer_load_dwordx4 v9, s[24:27], s30 offen lds")
    F=64
    SM=144
    k("s_mov_b32 s33, 0xffff0000")
    for i in range(10):
        k(f"s_waitcnt vmcnt({9-i+5})")
        for j in range(4):
            k(f"v_lshlrev_b32 v{F+8*i+2*j}, 16, v{R+4*i+j}\nv_and_b32 v{F+8*i+2*j+1}, s33, v{R+4*i+j}")
        for e in range(0,8,2):
            if i==1: k(f"v_pk_add_f32 v[{SM+e}:{SM+e+1}], v[{F+e}:{F+e+1}], v[{F+8+e}:{F+8+e+1}]")
            elif i>1: k(f"v_pk_add_f32 v[{SM+e}:{SM+e+1}], v[{SM+e}:{SM+e+1}], v[{F+8*i+e}:{F+8*i+e+1}]")
    k("s_nop 1")
    for r in (8,4,2,1):
        for e in range(8):
            k(f"v_add_f32_dpp v{SM+e}, v{SM+e}, v{SM+e} row_ror:{r} row_mask:0xf bank_mask:0xf")
    T=152
    for sw in ("v_permlane16_swap_b32","v_permlane32_swap_b32"):
        for e in range(8): k(f"v_mov_b32 v{T+e}, v{SM+e}")
        for e in range(8): k(f"{sw} v{T+e}, v{SM+e}")
        k("s_nop 1")
        for e in range(8): k(f"v_add_f32 v{SM+e}, v{SM+e}, v{T+e}")
    for e in range(8): k(f"v_mul_f32 v{SM+e}, {hex(f2u(-1.0/640))}, v{SM+e}")
    k(f"""s_lshl_b32 s19, s3, 4
    v_mul_u32_u24 v4, {WST}, v0
    v_add_u32 v4, s19, v4""")
    for i in range(10):
        for e in range(0,8,2):
            k(f"v_pk_add_f32 v[{F+8*i+e}:{F+8*i+e+1}], v[{F+8*i+e}:{F+8*i+e+1}], v[{SM+e}:{SM+e+1}]")
        for j in range(4):
            k(f"v_cvt_pk_bf16_f32 v{R+4*i+j}, v{F+8*i+2*j}, v{F+8*i+2*j+1}")
        k(f"ds_write_b128 v4, v[{R+4*i}:{R+4*i+3}] offset:{i*64*WST}")
    k(f"""
    v_lshrrev_b32 v5, 5, v0
    v_lshlrev_b32 v5, 3, v5
    v_bfe_u32 v6, v0, 2, 2
    v_add_u32 v5, v5, v6
    v_mul_u32_u24 v5, {WST}, v5
    v_bfe_u32 v7, v0, 4, 1
    v_lshl_add_u32 v5, v7, 5, v5
    v_and_b32 v7, 1, v0
    v_lshl_add_u32 v5, v7, 4, v5
    v_bfe_u32 v7, v0, 1, 1
    v_lshl_add_u32 v5, v7, 3, v5
    s_mul_i32 s19, s3, {160*WST}
    v_add_u32 v5, s19, v5
    """)
    k(f"""
    v_lshrrev_b32 v8, 4, v0
    v_lshl_add_u32 v8, v8, 3, v6
    v_mul_u32_u24 v8, 640, v8
    s_mul_i32 s19, s3, 160
    s_add_u32 s19, s19, {LD}
    v_add_u32 v8, s19, v8
    v_and_b32 v7, 3, v0
    v_lshl_add_u32 v9, v7, 3, v8
    v_lshl_add_u32 v8, v7, 4, v8
    """)
    k(f"""
    s_lshr_b32 s19, s16, 1
    s_cmp_ge_u32 s16, 6
    s_cselect_b32 s19, 1, 0
    s_lshl_b32 s34, s15, 1
    s_add_u32 s34, s34, s19
    s_mul_i32 s19, s19, 6
    s_sub_u32 s35, s16, s19
    s_cmp_ge_u32 s35, 3
    s_cselect_b32 s19, 1, 0
    s_mul_i32 s36, s19, 3
    s_sub_u32 s35, s35, s36
    s_mul_i32 s34, s34, 245760
    s_mul_i32 s19, s19, 6144
    s_add_u32 s34, s34, s19
    s_lshl_b32 s35, s35, 10
    s_add_u32 s34, s34, s35
    s_mul_i32 s19, s3, {5*12288}
    s_add_u32 s34, s34, s19
    s_add_u32 s34, s34, {WS_WGU}
    s_lshl_b32 s35, s29, 2
    s_add_u32 s35, s35, s3
    s_mul_i32 s35, s35, 245760
    s_mul_i32 s19, s28, 5120
    s_add_u32 s35, s35, s19
    s_add_u32 s35, s35, {WS_WD}
    """)
    k.srd(12,12,WS_HH)
    k("s_waitcnt vmcnt(0) lgkmcnt(0)\ns_barrier")
    O=64
    for a in range(5):
        va = "v8" if a<4 else "v9"
        off = 64*(a>>1)+8*(a&1) if a<4 else 128
        k(f"ds_read_b64_tr_b16 v[{O+4*a}:{O+4*a+1}], {va} offset:{off}")
        k(f"ds_read_b64_tr_b16 v[{O+4*a+2}:{O+4*a+3}], {va} offset:{off+2560}")
    O2=84
    k("s_waitcnt lgkmcnt(0)")
    for i in range(10):
        k(f"ds_read_b64_tr_b16 v[{O2+4*i}:{O2+4*i+1}], v5 offset:{i*16*WST}")
        k(f"ds_read_b64_tr_b16 v[{O2+4*i+2}:{O2+4*i+3}], v5 offset:{i*16*WST+4*WST}")
        if i==4:
            for a in range(4): k(f"buffer_store_dwordx4 v[{O+4*a}:{O+4*a+3}], v3, s[12:15], s35 offen offset:{1024*a}")
            k(f"s_add_u32 s35, s35, 4096\nbuffer_store_dwordx4 v[{O+16}:{O+19}], v3, s[12:15], s35 offen")
            k("s_waitcnt lgkmcnt(0)")
    k("s_waitcnt lgkmcnt(0)")
    for i in range(10):
        k(f"buffer_store_dwordx4 v[{O2+4*i}:{O2+4*i+3}], v3, s[12:15], s34 offen offset:{3072*(i&1)}")
        if i&1: k("s_add_u32 s34, s34, 12288")
    P.end()
```

```python
from asmgen import *
from g0 import *
from g1 import Cnt
NST=7; STG=20480; ONES=NST*STG
def gemm1(k,P):
    ACC=16; OP=112; SA=192; SX=196
    k(f"""
    v_lshrrev_b32 v1, 6, v0
    v_and_b32 v0, 63, v0
    v_readfirstlane_b32 s3, v1
    s_and_b32 s14, s2, 7
    s_lshl_b32 s14, s14, 1
    s_bfe_u32 s15, s2, 0x10003
    s_add_u32 s14, s14, s15
    s_lshr_b32 s15, s2, 4
    """)
    k(f"""
    v_lshrrev_b32 v2, 4, v0
    v_bfe_u32 v3, v0, 2, 2
    v_xor_b32 v3, v3, v2
    v_lshlrev_b32 v2, 12, v2
    v_lshl_add_u32 v2, v3, 6, v2
    v_and_b32 v3, 3, v0
    v_lshl_add_u32 v2, v3, 4, v2
    s_lshl_b32 s16, s3, 15
    s_lshl_b32 s17, s14, 8
    s_add_u32 s16, s16, s17
    v_add_u32 v2, s16, v2
    v_add_u32 v3, {16384-1024}, v2
    v_lshlrev_b32 v4, 4, v0
    s_mul_i32 s16, s15, 245760
    s_mul_i32 s17, s3, 3072
    s_add_u32 s16, s16, s17
    s_add_u32 s16, s16, {WS_WGU}
    s_lshl_b32 s18, s3, 11
    s_add_u32 s19, s17, 8192
    s_mov_b32 s17, {WS_HT}
    s_waitcnt lgkmcnt(0)
    """)
    k.srd(20,12,WS_HH)
    vm=Cnt(k,"vmcnt",63)
    def dma(ks):
        sl=(ks%NST)*STG
        o=[]
        o.append(f"s_add_u32 m0, s18, {sl}")
        o.append("buffer_load_dwordx4 v2, s[20:23], s17 offen lds")
        o.append("buffer_load_dwordx4 v3, s[20:23], s17 offen offset:1024 lds")
        o.append(f"s_add_u32 m0, s19, {sl}")
        o.append("buffer_load_dwordx4 v4, s[20:23], s16 offen lds")
        o.append("buffer_load_dwordx4 v4, s[20:23], s16 offen offset:1024 lds")
        o.append("buffer_load_dwordx4 v4, s[20:23], s16 offen offset:2048 lds")
        o.append(f"s_add_u32 s17, s17, {32*4096}\ns_add_u32 s16, s16, 12288")
        return o
    def emit(x, ks=None):
        if x.startswith("s_add_u32 m0"): k(x+"\ns_nop 0")
        else: k(x)
    P.stamp(1)
    for ks in range(NST):
        for x in dma(ks): emit(x)
    P.stamp(2)
    k(f"""
    v_lshrrev_b32 v5, 5, v0
    v_bfe_u32 v6, v0, 2, 2
    v_lshl_add_u32 v5, v5, 3, v6
    v_lshlrev_b32 v5, 8, v5
    v_bfe_u32 v7, v0, 4, 1
    v_lshl_add_u32 v5, v7, 5, v5
    v_and_b32 v7, 3, v0
    v_lshl_add_u32 v5, v7, 3, v5
    s_and_b32 s24, s3, 2
    v_xor_b32 v8, s24, v6
    v_xor_b32 v9, 1, v8
    v_lshl_add_u32 v8, v8, 6, v5
    v_lshl_add_u32 v9, v9, 6, v5
    s_and_b32 s25, s3, 1
    s_mul_i32 s25, s25, 6144
    s_add_u32 s25, s25, 8192
    v_add_u32 v10, s25, v4
    """)
    k(f"""
    v_lshrrev_b32 v11, 4, v0
    v_lshl_add_u32 v11, v11, 3, v6
    v_lshlrev_b32 v11, 8, v11
    s_lshr_b32 s24, s15, 2
    v_xor_b32 v12, s24, v6
    v_lshl_add_u32 v11, v12, 6, v11
    s_and_b32 s24, s15, 3
    s_lshl_b32 s24, s24, 4
    v_lshl_add_u32 v11, v7, 3, v11
    v_add_u32 v11, s24, v11
    v_cmp_gt_u32 vcc, 2, v7
    v_mov_b32 v12, 0x3f803f80
    v_mov_b32 v13, v12
    v_mov_b32 v14, {ONES}
    ds_write_b64 v14, v[12:13]
    ds_write_b64 v14, v[12:13] offset:1024
    """)
    for i in range(96): k(f"v_mov_b32 v{ACC+i}, 0")
    for i in range(8): k(f"v_mov_b32 v{SA+i}, 0")
    def reads(ks):
        sl=(ks%NST)*STG; b=OP+40*(ks&1); o=[]
        for kh in range(2):
            bb=b+20*kh
            for mb in range(2):
                va=["v8","v9"][mb]; d=bb+12+4*mb
                o.append(f"ds_read_b64_tr_b16 v[{d}:{d+1}], {va} offset:{sl+kh*4096}")
                o.append(f"ds_read_b64_tr_b16 v[{d+2}:{d+3}], {va} offset:{sl+kh*4096+1024}")
                o.append(f"ds_read_b128 v[{bb+4*mb}:{bb+4*mb+3}], v10 offset:{sl+kh*3072+mb*1024}")
            o.append(f"ds_read_b128 v[{bb+8}:{bb+11}], v10 offset:{sl+kh*3072+2048}")
        return o
    def fix(x):
        import re
        m=re.search(r"(v\d+) offset:(\d+)$",x)
        off=int(m.group(2)); r=int(m.group(1)[1:])
        if off>=65536*2: return x[:m.start()]+f"v{HI2[r]} offset:{off-131072}"
        if off>=65536: return x[:m.start()]+f"v{HI1[r]} offset:{off-65536}"
        return x
    HI1={8:200,9:201,10:202}; HI2={8:203,9:204,10:205}
    for r in (8,9,10):
        k(f"v_add_u32 v{HI1[r]}, 0x10000, v{r}\nv_add_u32 v{HI2[r]}, 0x20000, v{r}")
    def stats(ks):
        sl=(ks%NST)*STG
        lab=k.label("st")
        return f"""s_cmp_eq_u32 s3, {ks&3}
        s_cbranch_scc0 {lab}
        v_add_u32 v12, {sl}, v11
        v_cndmask_b32 v12, v14, v12, vcc
        v_mfma_f32_16x16x32_bf16 v[{SA}:{SA+3}], v[{SX}:{SX+3}], v[{SX}:{SX+3}], v[{SA}:{SA+3}]
        ds_read_b64_tr_b16 v[{SX}:{SX+1}], v12
        ds_read_b64_tr_b16 v[{SX+2}:{SX+3}], v12 offset:1024
        {lab}:"""
    P.stamp(3)
    k(f"s_waitcnt vmcnt({5*(NST-1)}) lgkmcnt(0)\ns_barrier")
    P.stamp(4)
    for x in reads(0): k(fix(x))
    k(stats(0))
    for ks in range(20):
        left = min(NST-1, 19-ks) - 1
        if ks<19: k(f"s_waitcnt vmcnt({5*max(left,0)}) lgkmcnt(0)\ns_barrier")
        else: k("s_waitcnt lgkmcnt(0)")
        if ks==1: P.stamp(5)
        rd = [fix(x) for x in reads(ks+1)] if ks<19 else []
        dm = dma(ks+NST) if ks+NST<20 else []
        gaps=[[] for _ in range(12)]
        for i,x in enumerate(rd): gaps[(i*9)//14].append(x)
        if dm:
            gaps[0].insert(0,dm[0]); gaps[1].insert(0,dm[1]); gaps[3].insert(0,dm[2]); gaps[4].append(dm[3]); gaps[5].insert(0,dm[4]); gaps[7].insert(0,dm[5]); gaps[9].insert(0,dm[6]); gaps[11].append(dm[7])
        if ks<19: gaps[10].append(stats(ks+1))
        b=OP+40*(ks&1); g=0
        for kh in range(2):
            bb=b+20*kh
            for a in range(3):
                for mb in range(2):
                    c=ACC+16*(2*a+mb)
                    k(f"v_mfma_f32_32x32x16_bf16 v[{c}:{c+15}], v[{bb+4*a}:{bb+4*a+3}], v[{bb+12+4*mb}:{bb+15+4*mb}], v[{c}:{c+15}]")
                    for x in gaps[g]: k(x)
                    g+=1
    P.stamp(6)
    k(f"v_mfma_f32_16x16x32_bf16 v[{SA}:{SA+3}], v[{SX}:{SX+3}], v[{SX}:{SX+3}], v[{SA}:{SA+3}]")
    k(f"""
    v_bfe_u32 v5, v0, 4, 1
    v_mul_u32_u24 v5, 49152, v5
    v_lshrrev_b32 v6, 5, v0
    v_lshl_add_u32 v5, v6, 8, v5
    v_and_b32 v6, 15, v0
    v_lshl_add_u32 v5, v6, 4, v5
    s_lshl_b32 s24, s14, 3
    s_and_b32 s25, s3, 2
    s_lshl_b32 s25, s25, 1
    s_add_u32 s24, s24, s25
    s_mul_i32 s24, s24, 49152
    s_mul_i32 s25, s15, 3072
    s_add_u32 s24, s24, s25
    s_and_b32 s25, s3, 1
    s_mul_i32 s25, s25, 1536
    s_add_u32 s24, s24, s25
    s_add_u32 s25, s24, {2*49152}
    s_add_u32 s28, s12, {WS_HH}
    s_addc_u32 s29, s13, 0
    """)
    k.srd(28,28,WS_RS-WS_HH+65536)
    for a in range(3):
        for mb in range(2):
            c=ACC+16*(2*a+mb)
            for i in range(8): k(f"v_mul_f32 v{c+i}, v{c+i}, v{c+8+i}")
            for i in range(4): k(f"v_cvt_pk_bf16_f32 v{c+8+i}, v{c+2*i}, v{c+2*i+1}")
            k(f"buffer_store_dwordx4 v[{c+8}:{c+11}], v5, s[28:31], s{24+mb} offen offset:{512*a}")
    k(f"""
    v_and_b32 v7, 3, v0
    v_cmp_eq_u32 vcc, 1, v7
    v_lshrrev_b32 v8, 4, v0
    v_lshrrev_b32 v9, 2, v6
    v_cndmask_b32 v{SA}, v{SA}, v{SA+1}, vcc
    v_cmp_eq_u32 vcc, 2, v7
    v_cmp_eq_u32 s[24:25], v8, v9
    v_cmp_eq_u32 s[26:27], 2, v8
    v_cndmask_b32 v{SA}, v{SA}, v{SA+2}, vcc
    v_cmp_eq_u32 vcc, 3, v7
    s_or_b64 s[24:25], s[24:25], s[26:27]
    v_lshlrev_b32 v9, 5, v6
    v_cndmask_b32 v{SA}, v{SA}, v{SA+3}, vcc
    v_cmp_gt_u32 vcc, 8, v6
    v_add_u32 v10, 4, v9
    s_and_b64 s[24:25], s[24:25], vcc
    v_cndmask_b32 v9, v10, v9, s[26:27]
    s_lshl_b32 s16, s14, 4
    s_add_u32 s16, s16, s15
    s_lshl_b32 s16, s16, 8
    s_lshl_b32 s17, s3, 3
    s_add_u32 s16, s16, s17
    s_add_u32 s16, s16, {WS_RS-WS_HH}
    s_mov_b64 exec, s[24:25]
    buffer_store_dword v{SA}, v9, s[28:31], s16 offen
    """)
    P.stamp(7); P.end()

def k2():
    k = Kern("k2_gemm1_kernel", (256,1,1), 256, ONES+2048, vgpr=256, agpr=0, sgpr=64)
    P=Prof(k,2,4)
    k("s_cmp_ge_u32 s2, 256\ns_cbranch_scc1 K2_END"); P.start()
    k("s_load_dwordx2 s[12:13], s[0:1], 96")
    gemm1(k,P)
    k("K2_END:\ns_endpgm")
    return k
```

```python
from asmgen import *
from g0 import *
from g1 import Cnt
RED=4*3*5120
def gemm2(k,P,load_wd=True):
    HB=64; AC=[24,44]
    k(f"""
    v_lshrrev_b32 v1, 6, v0
    v_and_b32 v0, 63, v0
    v_readfirstlane_b32 s3, v1
    s_and_b32 s14, s2, 7
    s_lshl_b32 s14, s14, 2
    s_bfe_u32 s15, s2, 0x20003
    s_add_u32 s14, s14, s15
    s_lshr_b32 s15, s2, 5
    v_lshlrev_b32 v2, 4, v0
    v_add_u32 v3, 4096, v2
    v_add_u32 v4, 8192, v2
    s_mul_i32 s16, s15, 245760
    s_mul_i32 s17, s3, 61440
    s_add_u32 s16, s16, s17
    s_add_u32 s16, s16, {WS_WD}
    s_mul_i32 s17, s3, 12288
    s_mul_i32 s18, s14, {4*49152}
    s_add_u32 s17, s17, s18
    s_add_u32 s17, s17, {WS_HH}
    """)
    for st in range(4):
        k(f"s_add_u32 s18, s3, {1+st}\ns_and_b32 s18, s18, 3\ns_mul_i32 s{36+st}, s18, {3*5120}\ns_mul_i32 s18, s18, 49152\ns_add_u32 s{24+st}, s17, s18")
    k("s_waitcnt lgkmcnt(0)")
    k.srd(20,12,WS_RS+65536)
    vm=Cnt(k,"vmcnt",63); lg=Cnt(k,"lgkmcnt",15)
    def hload(st,j):
        r=HB+4*(12*st+j)
        return (f"buffer_load_dwordx4 v[{r}:{r+3}], v{2+(j>>2)}, s[20:23], s{24+st} offen offset:{1024*(j&3)}", ("h",st,j))
    def wload(j,a):
        n=5*j+a; r=4*n
        s=f"buffer_load_dwordx4 a[{r}:{r+3}], v2, s[20:23], s16 offen offset:{1024*(n&3)}"
        if (n&3)==3: s+="\ns_add_u32 s16, s16, 4096"
        return (s, ("w",j,a))
    q=[]
    for j in range(12):
        q.append(hload(0,j))
        if load_wd: q+= [wload(j,a) for a in range(5)]
    for st in range(1,4):
        for j in range(12): q.append(hload(st,j))
    def pop(n=1):
        for _ in range(n):
            if q:
                x=q.pop(0); k(x[0]); vm.issue(x[1])
    P.stamp(1)
    pop(24 if load_wd else 14)
    P.stamp(2)
    k(f"""
    v_and_b32 v6, 15, v0
    v_lshrrev_b32 v7, 4, v0
    v_lshrrev_b32 v8, 2, v6
    v_and_b32 v9, 3, v0
    v_lshl_add_u32 v8, v8, 3, v9
    v_lshlrev_b32 v8, 12, v8
    v_lshl_add_u32 v8, v7, 4, v8
    v_lshlrev_b32 v9, 12, v6
    v_lshl_add_u32 v9, v7, 4, v9
    s_mul_i32 s28, s15, {80*4096}
    s_lshl_b32 s29, s14, 7
    s_add_u32 s28, s28, s29
    s_and_b32 s29, s3, 2
    s_lshl_b32 s29, s29, 5
    s_add_u32 s28, s28, s29
    s_add_u32 s28, s28, {WS_HT}
    s_add_u32 s29, s28, {4*4096}
    s_add_u32 s30, s28, {32*4096}
    s_add_u32 s31, s28, {36*4096}
    s_add_u32 s32, s28, {64*4096}
    s_lshl_b32 s33, s14, 2
    s_add_u32 s33, s33, s3
    s_lshl_b32 s34, s33, 9
    s_add_u32 s34, s34, {WS_RS}
    v_lshlrev_b32 v10, 5, v6
    """)
    k(f"""
    s_and_b32 s35, s3, 1
    s_lshl_b32 s35, s35, 4
    v_add_u32 v11, s35, v6
    v_lshlrev_b32 v16, 3, v7
    v_sub_u32 v11, v11, v16
    v_and_b32 v16, 1, v11
    v_lshlrev_b32 v16, 4, v16
    v_mov_b32 v17, 0x3f80
    v_lshlrev_b32 v16, v16, v17
    v_ashrrev_i32 v11, 1, v11
    """)
    for m in range(4):
        k(f"v_cmp_eq_u32 vcc, {m}, v11\ns_nop 1\nv_cndmask_b32 v{12+m}, 0, v16, vcc")
    k(f"""
    s_lshl_b32 s33, s33, 4
    v_add_u32 v11, s33, v6
    v_mul_u32_u24 v11, 1280, v11
    s_mul_i32 s35, s15, 160
    v_add_u32 v11, s35, v11
    v_lshl_add_u32 v16, v7, 3, v11
    v_lshl_add_u32 v11, v7, 4, v11
    s_mul_i32 s35, s3, {3*5120}
    v_add_u32 v17, s35, v2
    """)
    k.srd(8,10,NB_ACT)
    RA=HB
    RH=HB+20
    RS_=HB+40
    T=HB+48
    fill=[]
    for st in range(4):
        acc=AC[st&1]
        if st==1:
            so=["s28","s29","s30","s31","s32"]
            ext=[(f"buffer_load_dwordx4 v[{RA+4*a}:{RA+4*a+3}], {'v8' if a<4 else 'v9'}, s[20:23], {so[a]} offen",("r",a)) for a in range(5)]
            ext+=[(f"buffer_load_dwordx4 v[{RS_+4*i}:{RS_+4*i+3}], v10, s[20:23], s34 offen offset:{16*i}",("rs",i)) for i in range(2)]
            q[6:6]=ext
        if st>0:
            pa=AC[(st-1)&1]
            fill+= [None]*3
            fill.append(f"v_add_u32 v18, s{36+st-1}, v2")
            for a in range(5):
                fill.append(("ds",f"ds_write_b128 v18, v[{pa+4*a}:{pa+4*a+3}] offset:{(st-1)*5120+a*1024}"))
                fill.append(None)
        if st==2:
            fill+=[None]*4
            for a in range(5):
                fill.append(("vm",("r",a)))
                fill.append(f"v_mfma_f32_16x16x32_bf16 v[{RH+4*a}:{RH+4*a+3}], v[{RA+4*a}:{RA+4*a+3}], v[12:15], 0")
            fill.append(("vm",("rs",1)))
            r=RS_
            fill+=[f"v_add_f32 v{r}, v{r}, v{r+2}",f"v_add_f32 v{r+1}, v{r+1}, v{r+3}",f"v_add_f32 v{r+4}, v{r+4}, v{r+6}",f"v_add_f32 v{r+5}, v{r+5}, v{r+7}",
                   f"v_add_f32 v{r}, v{r}, v{r+4}",f"v_add_f32 v{r+1}, v{r+1}, v{r+5}",
                   f"v_mul_f32 v{r}, {hex(f2u(1/640))}, v{r}", f"v_mov_b32 v{r+2}, {hex(f2u(1e-5))}",
                   f"v_fmac_f32 v{r+2}, {hex(f2u(1/640))}, v{r+1}", f"v_fma_f32 v{r+2}, -v{r}, v{r}, v{r+2}", f"v_rcp_f32 v19, v{r+2}"]
        if st==3:
            fill+=[None]*2+["s_waitcnt lgkmcnt(0)\ns_barrier"]
            for s in range(3):
                for a in range(5):
                    d=T+20*s+4*a
                    fill.append(("ds",f"ds_read_b128 v[{d}:{d+3}], v17 offset:{s*5120+a*1024}",("p",s,a)))
            for a in range(5):
                fill.append(("lg",("p",1,a)))
                for r in range(4): fill.append(f"v_add_f32 v{T+4*a+r}, v{T+4*a+r}, v{T+20+4*a+r}")
            for a in range(5):
                fill.append(("lg",("p",2,a)))
                for r in range(4): fill.append(f"v_add_f32 v{T+4*a+r}, v{T+4*a+r}, v{T+40+4*a+r}")
        for j in range(12):
            for a in range(5):
                while ("h",st,j) not in vm.tags or (load_wd and ("w",j,a) not in vm.tags): pop()
                vm.wait(("h",st,j))
                if load_wd: vm.wait(("w",j,a))
                hb=HB+4*(12*st+j); w=4*(5*j+a)
                c = "0" if j==0 else f"v[{acc+4*a}:{acc+4*a+3}]"
                k(f"v_mfma_f32_16x16x32_bf16 v[{acc+4*a}:{acc+4*a+3}], a[{w}:{w+3}], v[{hb}:{hb+3}], {c}")
                n=2
                if (load_wd and st==0) : pop(1); n=1;
                elif a in (0,3) and q: pop(1); n=1
                if load_wd and st==0 and a==0: pop(1)
                while n>0 and fill:
                    x=fill.pop(0)
                    if x is None: n-=2; continue
                    if isinstance(x,tuple):
                        if x[0]=="vm": vm.wait(x[1]); continue
                        if x[0]=="lg": lg.wait(x[1]); continue
                        k(x[1]); lg.issue(x[2] if len(x)>2 else None)
                    else:
                        k(x)
                        if "lgkmcnt(0)" in x: lg.done=lg.n
                    n-=1
        P.stamp(3+st)
    assert not fill and not q, (fill,q)
    acc=AC[1]
    k("s_nop 7")
    for a in range(5):
        for r in range(4):
            k(f"v_add_f32 v{T+4*a+r}, v{T+4*a+r}, v{acc+4*a+r}")
        for r in range(4):
            k(f"v_fma_f32 v{T+4*a+r}, v{T+4*a+r}, v19, v{RH+4*a+r}")
        o=T+20+2*a
        k(f"v_cvt_pk_bf16_f32 v{o}, v{T+4*a}, v{T+4*a+1}\nv_cvt_pk_bf16_f32 v{o+1}, v{T+4*a+2}, v{T+4*a+3}")
        if a in (1,3): k(f"buffer_store_dwordx4 v[{o-2}:{o+1}], v11, s[8:11], 0 offen offset:{32*(a-1)}")
        if a==4: k(f"buffer_store_dwordx2 v[{o}:{o+1}], v16, s[8:11], 0 offen offset:128")
    P.stamp(7); P.end()

def k3():
    k = Kern("k3_gemm2_kernel", (256,1,1), 256, RED, vgpr=256, agpr=256, sgpr=64)
    P=Prof(k,3,4)
    k("s_cmp_ge_u32 s2, 256\ns_cbranch_scc1 K3_END"); P.start()
    k("s_load_dwordx2 s[12:13], s[0:1], 96\ns_load_dwordx2 s[10:11], s[0:1], 80")
    gemm2(k,P)
    k("K3_END:\ns_endpgm")
    return k
```

```python
import sys
from asmgen import *
from g0 import *
ks=[k0()]
try:
    from g1 import k1
    ks.append(k1())
    from g2 import k2
    ks.append(k2())
    from g3 import k3
    ks.append(k3())
except ImportError as e:
    print("partial:", e)
out = sys.argv[1] if len(sys.argv)>1 else "cur.s"
open(out,"w").write(build_file(ks))
```

```python
from fzc import *
WAVE_LDS = 4*4160 + 4608
CB = 163840 - 4*WAVE_LDS
FEARLY=int(os.environ.get('FEARLY','1')); FNT=int(os.environ.get('FNT','0'))

def prologue(k,P):
    k("s_cmp_ge_u32 s2, 256\ns_cbranch_scc1 FZ_END"); P.start()
    k("""
    s_load_dwordx4 s[4:7], s[0:1], 0
    s_load_dwordx4 s[8:11], s[0:1], 16
    s_load_dwordx4 s[12:15], s[0:1], 32
    s_load_dwordx2 s[56:57], s[0:1], 96
    s_load_dwordx4 s[40:43], s[0:1], 56
    s_load_dwordx2 s[44:45], s[0:1], 72
    v_lshrrev_b32 v3, 6, v0
    v_and_b32 v1, 15, v0
    v_lshrrev_b32 v2, 4, v0
    v_readfirstlane_b32 s3, v3
    s_mov_b32 s61, 20000
    s_cmp_ge_u32 s2, 208
    s_cbranch_scc1 FZ_STATS
    s_cmp_ge_u32 s2, 160
    s_cbranch_scc1 FZ_AROLE
    """)
def wsrd(k):
    k(f"s_mov_b32 s58, {WS_SZ}\ns_mov_b32 s59, 0x00020000\ns_mov_b32 s60, {WS_FL}\ns_load_dword s60, s[56:57], s60")
def mktag(k):
    k("s_waitcnt lgkmcnt(0)\ns_mul_i32 s60, s60, 1664525\ns_add_u32 s60, s60, 1013904223")

def tile(k,P):
    k(f"""
    s_and_b32 s32, s2, 15
    s_lshr_b32 s33, s2, 4
    s_mul_i32 s34, s32, 128*1280
    s_lshl_b32 s36, s33, 7
    s_add_u32 s34, s34, s36
    v_mul_u32_u24 v3, 8*1280, v2
    v_lshlrev_b32 v4, 3, v1
    v_add3_u32 v3, v3, v4, s34
    v_add_u32 v4, 4*1280, v3
    v_subrev_u32 v5, 3*1280, v3
    s_lshl_b32 s36, s33, 9
    v_lshlrev_b32 v6, 5, v1
    v_add_u32 v6, s36, v6
    s_lshl_b32 s35, s2, 2
    s_add_u32 s35, s35, s3
    s_lshl_b32 s36, s35, 12
    s_lshr_b32 s37, s35, 1
    s_lshl_b32 s37, s37, 2
    s_waitcnt lgkmcnt(0)
    """)
    k.srd(20,6,NB_ACT); k.srd(28,10,640*8)
    vm=Cnt(k,"vmcnt",63)
    KR=8; VR=30; QR=46; SH=62
    k(f"buffer_load_dwordx4 v[{SH}:{SH+3}], v6, s[28:31], 0 offen"); vm.issue()
    k(f"buffer_load_dwordx4 v[{SH+4}:{SH+7}], v6, s[28:31], 0 offen offset:16"); vm.issue("sh")
    def rowaddr(r):
        if r < 0: return "v5", (r+3)*1280
        if r < 4: return "v3", r*1280
        return "v4", (r-4)*1280
    for r in range(-3,8):
        a,o = rowaddr(r); k(f"buffer_load_dwordx2 v[{KR+2*(r+3)}:{KR+2*(r+3)+1}], {a}, s[20:23], 0 offen offset:{o} nt"); vm.issue("k")
    k.srd(24,8,NB_ACT)
    for r in range(8):
        a,o = rowaddr(r); k(f"buffer_load_dwordx2 v[{VR+2*r}:{VR+2*r+1}], {a}, s[24:27], 0 offen offset:{o} nt"); vm.issue("v")
    k.srd(16,4,NB_ACT)
    for r in range(8):
        a,o = rowaddr(r); k(f"buffer_load_dwordx2 v[{QR+2*r}:{QR+2*r+1}], {a}, s[16:19], 0 offen offset:{o} nt"); vm.issue("q")
    wsrd(k)
    k(f"""
    s_load_dword s47, s[14:15], s37
    s_add_u32 s48, s12, s36
    s_addc_u32 s49, s13, 0
    s_mul_i32 s46, s3, {WAVE_LDS}
    s_add_u32 s46, s46, {CB}
    v_and_b32 v124, 63, v0
    v_lshlrev_b32 v124, 4, v124
    v_add_u32 v125, 2, v124
    v_add_u32 v126, 4, v124
    v_add_u32 v127, 6, v124
    """)
    k.srd(48,48,4096); k.srd(52,48,4094)
    def fdma(c):
        k(f"s_add_u32 m0, s46, {4160*c+32}\ns_nop 0")
        for i in range(4):
            s = "s[52:55]" if c&1 else "s[48:51]"
            k(f"buffer_load_dwordx4 v{124+c}, {s}, 0 offen offset:{1024*i}"+(" nt" if c==0 and FNT else "")+" lds"); vm.issue()
    for c in range(FEARLY): fdma(c)
    k(f"""
    s_lshl_b32 s36, s33, 18
    s_lshl_b32 s37, s32, 8
    s_add_u32 s36, s36, s37
    v_lshlrev_b32 v6, 14, v1
    v_lshlrev_b32 v7, 4, v2
    v_add3_u32 v6, v6, v7, s36
    v_add_u32 v7, 0x2000, v6
    s_mov_b32 s38, 0xffff0000
    s_mov_b32 s39, {WS_QT}
    s_mov_b32 s40, 0x05040100
    s_mov_b32 s41, 0x07060302
    s_mov_b32 s42, 4096
    s_mov_b32 s43, {WS_QT+4096}
    """)
    CF=70; KF=86; AC=108
    P.stamp(1); vm.wait("sh")
    for c in range(4):
        for j in range(4):
            src = SH + 2*c + (j>>1)
            if j&1: k(f"v_and_b32 v{CF+4*j+c}, s38, v{src}")
            else:   k(f"v_lshlrev_b32 v{CF+4*j+c}, 16, v{src}")
    vm.wait("k")
    for p in range(2):
        for r in range(11):
            k(f"v_lshlrev_b32 v{KF+2*r}, 16, v{KR+2*r+p}\nv_and_b32 v{KF+2*r+1}, s38, v{KR+2*r+p}")
        for r in range(8):
            for j in range(4):
                a = KF+2*(r+3-j); c = CF+4*j+2*p; d = AC+2*r
                if j==0: k(f"v_pk_mul_f32 v[{d}:{d+1}], v[{a}:{a+1}], v[{c}:{c+1}]")
                else:    k(f"v_pk_fma_f32 v[{d}:{d+1}], v[{a}:{a+1}], v[{c}:{c+1}], v[{d}:{d+1}]")
        vm.wait("v")
        for r in range(8):
            k(f"v_lshlrev_b32 v{KF+2*r}, 16, v{VR+2*r+p}\nv_and_b32 v{KF+2*r+1}, s38, v{VR+2*r+p}")
        for r in range(8):
            d=AC+2*r; a=KF+2*r
            k(f"v_pk_mul_f32 v[{d}:{d+1}], v[{d}:{d+1}], v[{a}:{a+1}]")
        for h in range(2):
            o = SH+4*h
            for m in range(4):
                k(f"v_cvt_pk_bf16_f32 v{o+m}, v{AC+2*(7-2*m)+h}, v{AC+2*(6-2*m)+h}")
            c = 2*p+h
            ad = "v6" if c<2 else "v7"
            k(f"buffer_store_dwordx4 v[{o}:{o+3}], {ad}, {WS}, {'s42' if c&1 else '0'} offen sc1"); vm.issue()
        if p==0: k("s_nop 1")
    vm.wait("q")
    for c in range(4):
        o = KF+4*c
        for m in range(4):
            k(f"v_perm_b32 v{o+m}, v{QR+2*(2*m+1)+(c>>1)}, v{QR+2*(2*m)+(c>>1)}, s{41 if c&1 else 40}")
        ad = "v6" if c<2 else "v7"
        k(f"buffer_store_dwordx4 v[{o}:{o+3}], {ad}, {WS}, s{43 if c&1 else 39} offen sc1")
    for c in range(FEARLY,4): fdma(c)
    P.stamp(2)
    mktag(k)

def arole(k,P):
    k(f"""
    FZ_AROLE:
    s_sub_u32 s32, s2, 160
    s_cmp_ge_u32 s32, 24
    s_cselect_b32 s33, 1, 0
    s_mul_i32 s34, s33, 24
    s_sub_u32 s32, s32, s34
    v_and_b32 v0, 63, v0
    v_lshrrev_b32 v3, 3, v0
    v_bfe_u32 v4, v0, 1, 2
    v_and_b32 v5, 3, v3
    v_xor_b32 v4, v4, v5
    s_and_b32 s34, s3, 1
    v_xor_b32 v4, s34, v4
    v_mul_u32_u24 v3, 3072, v3
    v_lshl_add_u32 v3, v4, 5, v3
    v_and_b32 v4, 1, v0
    v_lshl_add_u32 v3, v4, 4, v3
    s_mul_i32 s34, s3, {8*3072}
    s_lshl_b32 s35, s32, 7
    s_add_u32 s34, s34, s35
    s_lshl_b32 s35, s3, 10
    s_cmp_eq_u32 s33, 1
    s_waitcnt lgkmcnt(0)
    s_cselect_b32 s40, s42, s40
    s_cselect_b32 s41, s43, s41
    """)
    k.srd(20,40,640*3072)
    for ks in range(20):
        k(f"s_mov_b32 m0, s35\ns_add_u32 s35, s35, 4096\nbuffer_load_dwordx4 v3, s[20:23], s34 offen nt lds\ns_add_u32 s34, s34, {32*3072}")
    wsrd(k)
    k(f"""
    v_lshrrev_b32 v4, 4, v0
    v_bfe_u32 v5, v0, 2, 2
    v_lshl_add_u32 v6, v4, 3, v5
    v_lshlrev_b32 v6, 7, v6
    v_and_b32 v7, 1, v4
    v_xor_b32 v7, v7, v5
    v_xor_b32 v7, s3, v7
    v_lshl_add_u32 v6, v7, 5, v6
    v_and_b32 v7, 3, v0
    v_lshl_add_u32 v5, v7, 3, v6
    v_add_u32 v8, 0x10000, v5
    v_bfe_u32 v6, v0, 3, 1
    v_mul_u32_u24 v6, 10240, v6
    v_lshl_add_u32 v6, v4, 7, v6
    v_and_b32 v7, 7, v0
    v_lshl_add_u32 v6, v7, 4, v6
    s_lshl_b32 s34, s32, 2
    s_add_u32 s34, s34, s3
    s_mul_i32 s34, s34, 20480
    s_mul_i32 s35, s33, {MS}
    s_add_u32 s34, s34, s35
    s_add_u32 s34, s34, {WS_WP}
    v_mov_b32 v12, 0x3f803f80
    v_mov_b32 v13, v12
    v_mov_b32 v14, v12
    v_mov_b32 v15, v12
    s_mov_b32 s38, 0xffff0000
    """)
    mktag(k)
    P.stamp(1)
    k("s_waitcnt vmcnt(0)\ns_barrier")
    P.stamp(2)
    F=16; SM=96; T=100
    lg=Cnt(k,"lgkmcnt",15)
    def rd(ks):
        va,off=("v5",ks*4096) if ks<16 else ("v8",ks*4096-65536)
        k(f"ds_read_b64_tr_b16 v[{F+4*ks}:{F+4*ks+1}], {va} offset:{off}"); lg.issue()
        k(f"ds_read_b64_tr_b16 v[{F+4*ks+2}:{F+4*ks+3}], {va} offset:{off+512}"); lg.issue(ks)
    for ks in range(6): rd(ks)
    for ks in range(20):
        if ks+6<20: rd(ks+6)
        lg.wait(ks)
        k(f"v_mfma_f32_16x16x32_bf16 v[{SM}:{SM+3}], v[12:15], v[{F+4*ks}:{F+4*ks+3}], {'0' if ks==0 else f'v[{SM}:{SM+3}]'}")
    k(f"s_nop 7\ns_nop 1\nv_mul_f32 v{SM}, {hex(f2u(-1.0/640))}, v{SM}\nv_mov_b32 v{SM+1}, v{SM}")
    for ks in range(20):
        t=T+8*(ks&1)
        for j in range(4):
            k(f"v_lshlrev_b32 v{t+2*j}, 16, v{F+4*ks+j}\nv_and_b32 v{t+2*j+1}, s38, v{F+4*ks+j}")
        for j in range(4):
            k(f"v_pk_add_f32 v[{t+2*j}:{t+2*j+1}], v[{t+2*j}:{t+2*j+1}], v[{SM}:{SM+1}]")
        for j in range(4):
            k(f"v_cvt_pk_bf16_f32 v{F+4*ks+j}, v{t+2*j}, v{t+2*j+1}")
        k(f"buffer_store_dwordx4 v[{F+4*ks}:{F+4*ks+3}], v6, {WS}, s34 offen offset:{512*(ks&7)} sc1")
        if (ks&7)==7: k("s_add_u32 s34, s34, 4096")
    P.stamp(3)
    k(f"s_lshl_b32 s34, s2, 7\ns_add_u32 s34, s34, {FL_F0}\ns_waitcnt vmcnt(0)\ns_barrier")
    post_flag(k,"s34",4,5)
    P.stamp(4)
    k("s_branch FZ_JOIN")

def stats(k,P):
    k(f"""
    FZ_STATS:
    s_sub_u32 s32, s2, 208
    s_mul_i32 s33, s32, 48
    v_add_u32 v3, s33, v2
    v_mul_u32_u24 v3, 1280, v3
    v_lshl_add_u32 v3, v1, 4, v3
    s_mov_b32 s38, 0xffff0000
    s_mov_b32 s34, {16*1280}
    s_mov_b32 s35, {32*1280}
    s_waitcnt lgkmcnt(0)
    """)
    k.srd(16,4,NB_ACT)
    R=8; X=72
    vm=Cnt(k,"vmcnt",63)
    for p in range(3):
        for i in range(5):
            r=R+20*p+4*i
            k(f"buffer_load_dwordx4 v[{r}:{r+3}], v3, s[16:19], {['0','s34','s35'][p]} offen offset:{256*i} nt"); vm.issue((p,i))
    wsrd(k)
    k("v_lshlrev_b32 v2, 2, v2\nv_cmp_eq_u32 s[36:37], 0, v1\nv_and_b32 v0, 63, v0")
    for p in range(3):
        for i in range(5):
            vm.wait((p,i))
            for j in range(4):
                s=R+20*p+4*i+j; d=X+2*(4*i+j)
                k(f"v_lshlrev_b32 v{d}, 16, v{s}\nv_and_b32 v{d+1}, s38, v{s}")
        k(f"v_pk_add_f32 v[4:5], v[{X}:{X+1}], v[{X+2}:{X+3}]")
        k(f"v_pk_add_f32 v[6:7], v[{X+4}:{X+5}], v[{X+6}:{X+7}]")
        for i in range(4,20,2):
            k(f"v_pk_add_f32 v[4:5], v[4:5], v[{X+2*i}:{X+2*i+1}]")
            k(f"v_pk_add_f32 v[6:7], v[6:7], v[{X+2*i+2}:{X+2*i+3}]")
        k("v_pk_add_f32 v[4:5], v[4:5], v[6:7]\nv_add_f32 v4, v4, v5")
        dpp_allreduce16(k,4)
        k(f"v_mul_f32 v4, {hex(f2u(-1.0/640))}, v4\nv_mov_b32 v5, v4")
        for i in range(20):
            k(f"v_pk_add_f32 v[{X+2*i}:{X+2*i+1}], v[{X+2*i}:{X+2*i+1}], v[4:5]")
        k(f"v_pk_mul_f32 v[112:113], v[{X}:{X+1}], v[{X}:{X+1}]")
        k(f"v_pk_mul_f32 v[6:7], v[{X+2}:{X+3}], v[{X+2}:{X+3}]")
        for i in range(2,20,2):
            k(f"v_pk_fma_f32 v[112:113], v[{X+2*i}:{X+2*i+1}], v[{X+2*i}:{X+2*i+1}], v[112:113]")
            k(f"v_pk_fma_f32 v[6:7], v[{X+2*i+2}:{X+2*i+3}], v[{X+2*i+2}:{X+2*i+3}], v[6:7]")
        k("v_pk_add_f32 v[6:7], v[112:113], v[6:7]\nv_add_f32 v6, v6, v7")
        dpp_allreduce16(k,6)
        k(f"""
        v_mov_b32 v7, {hex(f2u(1e-5))}
        v_fmac_f32 v7, {hex(f2u(1.0/640))}, v6
        v_rsq_f32 v7, v7
        s_nop 0
        v_mul_f32 v4, v4, v7
        s_mov_b64 exec, s[36:37]
        ds_write_b32 v2, v7 offset:{64*p}
        ds_write_b32 v2, v4 offset:{256+64*p}
        s_mov_b64 exec, -1
        """)
    L=k.label("st")
    k(f"""
    s_mul_i32 s33, s32, 192
    v_lshlrev_b32 v3, 4, v1
    v_add_u32 v3, s33, v3
    v_cmp_gt_u32 vcc, 0x2000, v3
    v_cmp_gt_u32 s[34:35], 12, v1
    v_cmp_gt_u32 s[36:37], 32, v0
    v_lshrrev_b32 v4, 4, v0
    v_lshl_add_u32 v3, v4, 13, v3
    v_lshlrev_b32 v4, 4, v0
    s_and_b64 s[34:35], s[34:35], vcc
    s_and_b64 s[34:35], s[34:35], s[36:37]
    s_mov_b32 s33, {WS_A}
    """)
    mktag(k)
    k(f"""
    s_lshl_b32 s36, s2, 7
    s_add_u32 s36, s36, {FL_F0}
    s_barrier
    s_cmp_eq_u32 s3, 0
    s_cbranch_scc0 {L}
    ds_read_b128 v[8:11], v4
    s_waitcnt lgkmcnt(0)
    s_mov_b64 exec, s[34:35]
    buffer_store_dwordx4 v[8:11], v3, {WS}, s33 offen sc1
    s_mov_b64 exec, -1
    s_waitcnt vmcnt(0)
    """)
    post_flag(k,"s36",4,5,wave0=False)
    k(f"{L}:")
    P.stamp(2)
    LD=1024
    k(f"""
    s_cmp_lt_u32 s32, 16
    s_cbranch_scc1 FZ_JOIN
    s_sub_u32 s32, s32, 16
    s_lshr_b32 s33, s32, 1
    s_and_b32 s34, s32, 1
    s_mul_i32 s35, s33, 96
    s_mul_i32 s36, s3, 24
    s_add_u32 s35, s35, s36
    s_mul_i32 s35, s35, 1280
    s_mul_i32 s36, s34, 640
    s_add_u32 s35, s35, s36
    s_mul_i32 s36, s3, 15360
    s_add_u32 s36, s36, {LD}
    v_lshlrev_b32 v3, 4, v0
    """)
    k.srd(24,44,1536*1280)
    for i in range(15):
        k(f"""v_add_u32 v4, {64*i}, v0
        v_mul_u32_u24 v4, 205, v4
        v_lshrrev_b32 v4, 13, v4
        v_mul_u32_u24 v4, 640, v4
        v_add_u32 v{8+i}, v4, v3""")
        if (i&3)==0:
            k(f"s_mov_b32 m0, s36\ns_add_u32 s36, s36, 4096")
            if i: k("s_add_u32 s35, s35, 4096")
        k(f"buffer_load_dwordx4 v{8+i}, s[24:27], s35 offen offset:{1024*(i&3)} nt lds")
    k(f"""
    v_lshrrev_b32 v4, 4, v0
    v_bfe_u32 v5, v0, 2, 1
    v_bfe_u32 v6, v0, 3, 1
    v_lshl_add_u32 v5, v6, 2, v5
    v_and_b32 v6, 3, v0
    s_mul_i32 s35, s3, 160
    s_add_u32 s35, s35, {LD}
    """)
    AD=24
    for n in range(3):
        k(f"""
        v_add_u32 v7, {4*n}, v4
        v_mul_u32_u24 v40, 43, v7
        v_lshrrev_b32 v40, 7, v40
        v_mul_u32_u24 v41, 3, v40
        v_sub_u32 v7, v7, v41
        v_cmp_gt_u32 vcc, 2, v7
        v_lshlrev_b32 v7, 1, v7
        v_mul_u32_u24 v40, 24, v40
        v_cndmask_b32 v7, 16, v7, vcc
        v_add3_u32 v7, v7, v40, v5
        v_mov_b32 v41, 8
        v_cndmask_b32 v41, 2, v41, vcc
        v_add_u32 v41, v41, v7
        v_mul_u32_u24 v7, 640, v7
        v_mul_u32_u24 v41, 640, v41
        v_add_u32 v7, s35, v7
        v_add_u32 v41, s35, v41
        v_lshl_add_u32 v{AD+4*n}, v6, 4, v7
        v_lshl_add_u32 v{AD+4*n+1}, v6, 4, v41
        v_lshl_add_u32 v{AD+4*n+2}, v6, 3, v7
        v_lshl_add_u32 v{AD+4*n+3}, v6, 3, v41
        """)
    k(f"""
    s_lshl_b32 s35, s34, 2
    s_add_u32 s35, s35, s3
    s_mul_i32 s35, s35, 245760
    s_mul_i32 s36, s33, 15360
    s_add_u32 s35, s35, s36
    s_add_u32 s35, s35, {WS_WD}
    s_lshl_b32 s36, s32, 7
    s_add_u32 s36, s36, {FL_FD}
    s_waitcnt vmcnt(0)
    s_barrier
    """)
    O=48
    for n in range(3):
        for a in range(5):
            o=O+20*n+4*a; va=AD+4*n+(0 if a<4 else 2)
            off = 64*(a>>1)+8*(a&1) if a<4 else 128
            k(f"ds_read_b64_tr_b16 v[{o}:{o+1}], v{va} offset:{off}")
            k(f"ds_read_b64_tr_b16 v[{o+2}:{o+3}], v{va+1} offset:{off}")
        k("s_waitcnt lgkmcnt(0)")
        for a in range(5):
            i=5*n+a; o=O+4*i
            k(f"buffer_store_dwordx4 v[{o}:{o+3}], v3, {WS}, s35 offen offset:{1024*(i&3)} sc1")
            if (i&3)==3: k("s_add_u32 s35, s35, 4096")
    k("s_waitcnt vmcnt(0)\ns_barrier")
    post_flag(k,"s36",4,5)
    P.stamp(3)
    k("s_branch FZ_JOIN")
```

```python
from fzc import *
from fz1 import WAVE_LDS, CB, FEARLY
OOB="0x80000000"
E_=lambda n,d: int(os.environ.get(n,str(d)))
def wreg(n):
    if n<12: return ("v",208+4*n)
    b={1:96,2:224,3:64,4:192,5:32,6:160}[(n-4)//8]
    return ("a",b+4*((n-12)&7))
def rr(p,n=4): return f"{p[0]}[{p[1]}:{p[1]+n-1}]"
def wload(n):
    ks,a=divmod(n,3)
    so=(27 if a==1 else 24)+(ks>>3)
    return f"buffer_load_dwordx4 {rr(wreg(n))}, {'v7' if a==2 else 'v6'}, {WS}, s{so} offen offset:{512*(ks&7)} sc1"
def g1_pre(k):
    k(f"""
    s_bfe_u32 s20, s2, 0x20001
    s_lshl_b32 s20, s20, 2
    s_bfe_u32 s21, s2, 0x20003
    s_add_u32 s20, s20, s21
    s_and_b32 s21, s2, 1
    s_lshl_b32 s21, s21, 3
    s_lshr_b32 s22, s2, 5
    s_add_u32 s21, s21, s22
    s_lshl_b32 s22, s21, 2
    s_add_u32 s22, s22, s3
    s_mul_i32 s24, s22, 30720
    s_add_u32 s24, s24, {WS_WP}
    s_add_u32 s25, s24, 4096
    s_add_u32 s26, s24, 8192
    s_add_u32 s27, s24, {MS}
    s_add_u32 s28, s25, {MS}
    s_add_u32 s29, s26, {MS}
    s_mov_b32 s30, {FL_F0+160*128}
    s_lshr_b32 s23, s2, 7
    s_lshl_b32 s31, s3, 3
    s_add_u32 s23, s23, s31
    s_lshl_b32 s23, s23, 7
    s_add_u32 s23, s23, {FL_FD}
    s_lshr_b32 s53, s2, 5
    s_mul_i32 s53, s53, 245760
    s_mul_i32 s31, s3, 61440
    s_add_u32 s53, s53, s31
    s_add_u32 s53, s53, {WS_WD}
    s_lshl_b32 s50, s3, 12
    s_mul_i32 s51, s20, 81920
    s_add_u32 s51, s51, s50
    s_add_u32 s51, s51, {WS_HB}
    v_lshrrev_b32 v8, 4, v0
    v_and_b32 v9, 7, v0
    v_lshl_add_u32 v8, v8, 3, v9
    v_lshlrev_b32 v8, 4, v8
    v_bfe_u32 v9, v0, 3, 1
    v_mul_u32_u24 v6, 10240, v9
    v_add_u32 v6, v6, v8
    v_mul_u32_u24 v7, {MS}, v9
    v_add_u32 v8, 20480, v8
    v_add_u32 v7, v7, v8
    """)

def wdreg(n):
    if n<8: return ("a",4*n)
    if n<16: return ("a",128+4*(n-8))
    if n<40: return ("v",112+4*(n-16))
    return wreg(n-28)
def wdload(vm,n,va):
    o=[("i",vm,f"buffer_load_dwordx4 {rr(wdreg(n))}, v{va}, {WS}, s53 offen offset:{1024*(n&3)} sc1",("Wd",n))]
    if (n&3)==3: o.append("s_add_u32 s53, s53, 4096")
    return o
def h0addr(a,b):
    return [f"v_min_u32 v{a}, 39, v0", f"s_lshl_b32 s30, s3, 10", f"v_and_b32 v{b}, 7, v{a}", f"v_lshrrev_b32 v{a}, 3, v{a}",
            f"s_add_u32 s30, s30, {FL_H0}", f"v_lshl_add_u32 v{a}, v{a}, 5, v{b}", f"s_add_u32 s31, s30, {FL_H1-FL_H0}", f"v_lshlrev_b32 v4, 7, v{a}"]
def fdaddr():
    return ["v_and_b32 v178, 3, v0","v_lshlrev_b32 v178, 8, v178","v_lshlrev_b32 v179, 4, v0"]
def g1_addr(a,b):
    return [f"v_lshrrev_b32 v{a}, 3, v0", f"v_bfe_u32 v{b}, v0, 1, 2", f"v_and_b32 v5, 3, v{a}", f"v_xor_b32 v{b}, v{b}, v5",
            f"v_lshlrev_b32 v5, 7, v{a}", f"v_lshl_add_u32 v5, v{b}, 5, v5", f"v_and_b32 v{b}, 1, v0", f"v_lshl_add_u32 v5, v{b}, 4, v5",
            "v_xor_b32 v6, 32, v5"]

def conv(k,P):
    ACC=16; RING=48; QR=176; T=192; FD=12
    GB=4*4160
    k(f"""
    v_cmp_eq_u32 vcc, 0, v0
    v_mov_b32 v11, {OOB}
    v_and_b32 v0, 63, v0
    v_cndmask_b32 v11, v11, 0, vcc
    v_and_b32 v6, 15, v0
    v_lshrrev_b32 v7, 4, v0
    v_mov_b32 v8, 0
    v_mov_b32 v9, 0
    v_lshlrev_b32 v10, 3, v0
    v_add_u32 v10, s46, v10
    ds_write_b64 v10, v[8:9] offset:{GB}
    s_mov_b64 exec, 15
    ds_write_b64 v10, v[8:9]
    s_mov_b64 exec, -1
    v_add_u32 v1, 1, v6
    v_and_b32 v1, 3, v1
    v_sub_u32 v2, v6, v1
    v_lshlrev_b32 v8, 3, v7
    v_sub_u32 v2, v2, v8
    v_add_u32 v2, 25, v2
    v_lshlrev_b32 v2, 1, v2
    v_mul_u32_u24 v1, 4160, v1
    v_add3_u32 v1, v1, v2, s46
    v_sub_u32 v16, v6, v8
    v_add_u32 v16, 25, v16
    v_lshlrev_b32 v16, 1, v16
    v_add_u32 v16, s46, v16
    v_lshlrev_b32 v2, 5, v6
    v_lshl_add_u32 v4, v7, 3, v2
    v_lshlrev_b32 v5, 1, v4
    v_lshl_add_u32 v2, v7, 4, v2
    s_add_u32 s36, s46, {GB+32}
    v_add_u32 v2, s36, v2
    s_and_b32 s37, s35, 1
    s_lshl_b32 s37, s37, 4
    s_lshr_b32 s47, s47, s37
    s_and_b32 s47, s47, 0xffff
    v_sub_u32 v8, v8, v6
    v_subrev_u32 v8, 9, v8
    v_and_b32 v9, 1, v8
    v_lshlrev_b32 v9, 4, v9
    v_lshlrev_b32 v9, v9, s47
    v_ashrrev_i32 v8, 1, v8
    v_mov_b32 v3, s60
    s_lshl_b32 s34, s2, 7
    s_add_u32 s33, s34, {FL_F0}
    s_waitcnt vmcnt({4*(4-FEARLY)})
    s_barrier
    buffer_store_dword v3, v11, {WS}, s33 offen sc1
    """)
    P.stamp(3)
    for m in range(4):
        k(f"v_cmp_eq_u32 vcc, {m}, v8\ns_nop 1\nv_cndmask_b32 v{FD+m}, 0, v9, vcc")
    k(f"""
    v_and_b32 v8, 1, v7
    v_lshlrev_b32 v8, 2, v8
    v_lshrrev_b32 v9, 2, v6
    v_add_u32 v8, v8, v9
    v_mul_u32_u24 v10, 81920, v8
    v_and_b32 v8, 3, v6
    v_lshl_add_u32 v10, v8, 5, v10
    v_lshrrev_b32 v8, 1, v7
    v_lshl_add_u32 v10, v8, 4, v10
    s_lshl_b32 s40, s35, 7
    s_add_u32 s40, s40, {WS_HB}
    s_add_u32 s41, s40, {8*81920}
    s_add_u32 s42, s40, {16*81920}
    s_add_u32 s43, s40, {24*81920}
    s_and_b32 s32, s2, 0xf0
    v_cmp_gt_u32 vcc, 16, v0
    v_mov_b32 v17, s32
    v_mov_b32 v8, 192
    v_cndmask_b32 v17, v8, v17, vcc
    v_add_u32 v17, v17, v0
    v_lshlrev_b32 v17, 7, v17
    s_mov_b32 s32, {FL_F0}
    s_lshl_b32 s36, s35, 12
    s_add_u32 s37, s36, {WS_QT}
    s_lshl_b32 s44, s3, 12
    s_add_u32 s45, s44, {WS_A}
    s_add_u32 s48, s34, {FL_H0}
    s_add_u32 s49, s34, {FL_H1}
    v_lshlrev_b32 v3, 4, v0
    """)
    g1_pre(k)
    vm = Cnt(k,"vmcnt",63); lg = Cnt(k,"lgkmcnt",15)
    loc = {}
    for p in range(4):
        loc[("F",p)] = ("a", 32*p); loc[("G",p)] = ("a", 128+32*p)
    ring = {("G",4):0,("F",4):1,("G",5):2,("F",5):3,("G",6):0,("F",6):1,("G",7):2,("F",7):3}
    for kk,v in ring.items(): loc[kk] = ("v", RING+32*v)
    def reg(kind, blk, fr, lo=0, n=4):
        f,b = loc[(kind,blk)]
        return f"{f}[{b+4*fr+lo}:{b+4*fr+lo+n-1}]"
    def reads(kind, blk):
        o=[]
        if kind=="G":
            for fr in (range(7,-1,-1)):
                o.append(("i",lg,f"ds_read_b128 {reg('G',blk,fr)}, v2 offset:{64*(8*blk+fr)}", ("G",blk,fr)))
        else:
            for fr in range(8):
                u=8*blk+fr
                if u==0: o.append(("i",lg,f"ds_read_b128 {reg('F',0,0)}, v16", ("F",0,0)))
                else:
                    o.append(("i",lg,f"ds_read_b64 {reg('F',blk,fr,0,2)}, v1 offset:{64*u}", None))
                    o.append(("i",lg,f"ds_read_b64 {reg('F',blk,fr,2,2)}, v1 offset:{64*u+8}", ("F",blk,fr)))
        return o
    S=Stream(k)
    k("s_waitcnt vmcnt(1) lgkmcnt(0)")
    for p in range(6): S.add(reads("F",p))
    S.flush()
    poll(k,17,"s32",18)
    P.stamp(4)
    def gd(i): k(f"buffer_load_dwordx4 v3, {WS}, s36 offen offset:{1024*i} sc1 lds"); vm.issue(f"P{i}")
    def ql(t): k(f"buffer_load_dwordx2 v[{QR+2*t}:{QR+2*t+1}], v4, {WS}, s37 offen offset:{512*t} sc1"); vm.issue(f"Q{t}")
    k(f"s_add_u32 m0, s46, {GB+512}\ns_nop 0"); gd(0); gd(1)
    k("s_mov_b32 m0, s44\ns_nop 0")
    for i in range(4): k(f"buffer_load_dwordx4 v3, {WS}, s45 offen offset:{1024*i} sc1 lds"); vm.issue("AB")
    for t in range(4): ql(t)
    k(f"s_add_u32 m0, s46, {GB+512}\ns_nop 0"); gd(2); gd(3)
    for t in range(4,8): ql(t)
    clr=[f"s_mul_i32 s54, s35, 10240", "v_mov_b32 v208, -1", f"s_add_u32 s54, s54, {WS_HH}", "v_mov_b32 v209, -1","v_mov_b32 v210, -1","v_mov_b32 v211, -1","v_lshlrev_b32 v212, 4, v0"]
    for i in range(10):
        clr.append(("i",vm,f"buffer_store_dwordx4 v[208:211], v212, {WS}, s54 offen offset:{1024*(i&3)} sc1","CLR"))
        if (i&3)==3: clr.append("s_add_u32 s54, s54, 4096")
    CLRB=E_("CLRB",-1)
    if CLRB<0: S.add(clr); S.flush()
    k("v_min_u32 v4, 47, v0\nv_lshlrev_b32 v4, 7, v4\nv_mov_b32 v3, s60\ns_waitcnt lgkmcnt(0)"); lg.drained()
    def rdab(t):
        A=T+8*(t&1)
        return [("i",lg,f"ds_read_b128 v[{A}:{A+3}], v5 offset:{1024*t}",None),("i",lg,f"ds_read_b128 v[{A+4}:{A+7}], v5 offset:{8192+1024*t}",("ab",t))]
    def epi(t):
        q=QR+2*t; A=T+8*(t&1); B=A+4; Y=ACC+4*t; C=T+4+2*(t&1)
        o=[("w",vm,f"Q{t}"),("w",lg,("ab",t))]
        for h in range(2):
            o+=[f"v_lshlrev_b32 v8, 16, v{q+h}", f"v_and_b32 v9, s38, v{q+h}",
                f"v_pk_fma_f32 v[{A+2*h}:{A+2*h+1}], v[8:9], v[{A+2*h}:{A+2*h+1}], v[{B+2*h}:{B+2*h+1}]",
                f"v_pk_fma_f32 v[{A+2*h}:{A+2*h+1}], v[{A+2*h}:{A+2*h+1}], v[{Y+2*h}:{Y+2*h+1}], v[8:9]"]
        o+=[f"v_cvt_pk_bf16_f32 v{C}, v{A}, v{A+1}", f"v_cvt_pk_bf16_f32 v{C+1}, v{A+2}, v{A+3}"]
        return o
    def pst(t,sp):
        C=T+4
        return sp+[f"v_permlane16_swap_b32 v{C}, v{C+2}", f"v_permlane16_swap_b32 v{C+1}, v{C+3}",
                ("i",vm,f"buffer_store_dwordx4 v[{C}:{C+3}], v10, {WS}, s{40+t//2} offen sc1",f"H{t}")]
    wl=lambda a,b: [("i",vm,wload(n),("W",n)) for n in range(a,b)]
    blocks = [(0,0),(0,1),(1,0),(0,2),(1,1),(2,0),(0,3),(1,2),(2,1),(3,0),
              (1,3),(2,2),(3,1),(2,3),(3,2),(3,3),
              (0,4),(1,4),(2,4),(3,4),(4,0),(4,1),(4,2),(4,3),
              (0,5),(1,5),(2,5),(5,0),(5,1),(5,2),(0,6),(1,6),(6,0),(6,1),(0,7),(7,0)]
    plan = {i:[] for i in range(len(blocks)+1)}
    plan[0] = reads("G",1)
    plan[1] = [("w",vm,"P1")] + reads("G",2) + reads("G",3)
    if CLRB>=0: plan[CLRB] += clr
    plan[3] += [("w",vm,"AB"),"s_barrier"] + rdab(0)+rdab(1)+[None]*6+epi(0)+epi(1)+pst(0,[None,None])
    plan[E_("FAP",4)] += [("i",vm,f"buffer_load_dword v255, v4, {WS}, s30 offen sc1","FA")]
    plan[6] = [("w",vm,"P2")] + reads("G",4) + reads("G",5)
    plan[8] = rdab(2)+rdab(3)+[None]*6+epi(2)
    plan[10] = [None]*6+epi(3)+pst(2,[None,None])
    def fachk():
        vm.wait("FA"); check_or_poll(k,4,"s30",255)
    plan[E_("FAC",13)] += [("x",fachk)]+wl(0,12)+h0addr(8,9)+fdaddr()
    plan[20] = [("w",vm,"P3")] + reads("G",6) + rdab(4) + wl(12,20)
    plan[22] = [("i",vm,f"buffer_load_dword v177, v178, {WS}, s23 offen sc1","FDp")]+epi(4)
    plan[E_("H0B",19)] += [("w",vm,"H2"),("w",vm,"CLR"),"s_barrier",("i",vm,f"buffer_store_dword v3, v11, {WS}, s48 offen sc1",None)]
    plan[24] += reads("F",6) + wl(20,28)
    plan[27] = reads("G",7) + rdab(5) + wl(28,36)
    plan[29] = epi(5)+pst(4,[None,None])
    def fdchk():
        vm.wait("FDp"); check_or_poll(k,178,"s23",177)
    plan[30] = reads("F",7) + wl(36,44)
    plan[32] = rdab(6)+rdab(7) + wl(44,52)
    plan[33] = [("x",fdchk)]+epi(6)
    plan[34] = wl(52,60)+g1_addr(180,181)
    plan[35] = sum([wdload(vm,n,179) for n in range(8)],[])
    hp=E_("H0P",32)
    plan[hp] = [("i",vm,f"buffer_load_dword v176, v4, {WS}, s30 offen sc1","H0p")]+plan[hp]
    vm.wait("P0")
    P.stamp(5)
    S.add(reads("G",0)); S.flush()
    seen=set()
    for bi,(p,q) in enumerate(blocks):
        S.add(plan[bi])
        Y=ACC+4*(p+q)
        for r in range(8):
            for tag in (("F",p,r),("G",q,7-r)):
                S.until(lg,tag); lg.wait(tag)
            c = f"v[{Y}:{Y+3}]" if (p+q) in seen else "0"
            seen.add(p+q)
            k(f"v_mfma_f32_16x16x32_bf16 v[{Y}:{Y+3}], {reg('F',p,r)}, {reg('G',q,7-r)}, {c}")
            if r==0 and p==0:
                k(f"v_mfma_f32_16x16x32_bf16 v[{Y}:{Y+3}], v[{FD}:{FD+3}], {reg('G',q,7)}, v[{Y}:{Y+3}]")
            S.pop(2)
    S.flush()
    k("s_nop 7")
    S.add(epi(7)+pst(6,["s_nop 1"])+sum([wdload(vm,n,179) for n in range(8,16)],[])); S.flush()
    P.stamp(6)
    if STOP<=2:
        vm.wait("H6")
        k(f"s_barrier\nbuffer_store_dword v3, v11, {WS}, s49 offen sc1\ns_branch FZ_FIN")
        return
    k("s_barrier")
    vm.wait("H0p"); check_or_poll(k,4,"s30",176)
    k("s_branch FZ_G1")

def join(k,P):
    if STOP<=2: return
    g1_pre(k)
    k("v_min_u32 v4, 47, v0\nv_lshlrev_b32 v4, 7, v4")
    poll(k,4,"s30",5)
    for n in range(60): k(wload(n))
    vm=Cnt(k,"vmcnt",63); S=Stream(k)
    S.add(fdaddr()); S.flush()
    poll(k,178,"s23",177)
    S.add(sum([wdload(vm,n,179) for n in range(16)],[])+h0addr(8,9)+g1_addr(8,9)+[f"v_mov_b32 v11, {OOB}","s_mov_b32 s49, 0"]); S.flush()
    poll(k,4,"s30",176,sleep=E_("JSL",2))
    k("FZ_G1:")
    import fz3
    fz3.g1(k,P)
```

```python
from fzc import *
from fz2 import wreg, rr, wdreg, wdload, OOB, E_
MF="v_mfma_f32_16x16x32_bf16"
SA=96; SB=100; SX=104; ONES=108; RING=16
BLK=49152

def g1(k,P):
    vm=Cnt(k,"vmcnt",63); lg=Cnt(k,"lgkmcnt",15); S=Stream(k)
    vm.issue("H6")
    for n in range(8,16): vm.issue(("Wd",n))
    def dma(slab):
        o=[]
        for j in range(5):
            o+=["s_mov_b32 m0, s50","s_add_u32 s50, s50, 16384"]
            for i in range(4):
                o.append(("i",vm,f"buffer_load_dwordx4 v{5+(i&1)}, {WS}, s51 offen offset:{1024*i} sc1 lds",("S",slab,j)))
            o.append(f"s_add_u32 s51, s51, {16384 if j<4 else 16384+15*81920}")
        return o
    P.stamp(7)
    S.add(dma(0)); S.flush()
    k(f"""
    s_load_dwordx2 s[44:45], s[0:1], 80
    v_mov_b32 v13, v4
    v_mov_b32 v12, s60
    v_lshrrev_b32 v16, 4, v0
    v_bfe_u32 v17, v0, 2, 2
    v_and_b32 v18, 3, v0
    v_and_b32 v19, 15, v0
    v_lshl_add_u32 v1, v16, 3, v17
    v_lshlrev_b32 v1, 7, v1
    v_and_b32 v20, 1, v16
    v_xor_b32 v20, v20, v17
    v_lshl_add_u32 v1, v20, 5, v1
    v_lshl_add_u32 v1, v18, 3, v1
    v_xor_b32 v2, 32, v1
    v_xor_b32 v3, 64, v1
    v_xor_b32 v4, 0x60, v1
    s_and_b32 s32, s21, 3
    s_lshl_b32 s33, s32, 5
    v_xor_b32 v7, s33, v1
    s_lshl_b32 s33, s3, 12
    v_add_u32 v7, s33, v7
    v_lshlrev_b32 v14, 4, v0
    v_cmp_gt_u32 vcc, 48, v0
    v_mov_b32 v21, {OOB}
    s_lshr_b32 s33, s21, 2
    v_cmp_eq_u32 s[34:35], v16, v17
    v_cndmask_b32 v8, v21, v14, vcc
    v_cmp_eq_u32 vcc, s33, v17
    v_xor_b32 v20, s33, v16
    v_cmp_gt_u32 s[36:37], 2, v20
    s_lshl_b32 s32, s32, 9
    s_lshl_b32 s33, s3, 3
    s_add_u32 s32, s32, s33
    v_lshlrev_b32 v15, 5, v19
    v_add_u32 v15, s32, v15
    v_add_u32 v20, 4, v15
    s_and_b64 s[36:37], s[36:37], vcc
    v_cndmask_b32 v15, v15, v20, s[34:35]
    v_cndmask_b32 v15, v21, v15, s[36:37]
    v_cmp_eq_u32 s[36:37], 1, v18
    v_cmp_eq_u32 s[40:41], 2, v18
    v_cmp_eq_u32 s[42:43], 3, v18
    v_mov_b32 v{ONES}, 0x3f803f80
    v_mov_b32 v{ONES+1}, 0x3f803f80
    v_mov_b32 v{ONES+2}, 0x3f803f80
    v_mov_b32 v{ONES+3}, 0x3f803f80
    s_mov_b32 s38, 0xffff0000
    s_mul_i32 s52, s22, 768
    s_mul_i32 s32, s20, {4*BLK}
    s_add_u32 s52, s52, s32
    s_add_u32 s52, s52, {WS_HH}
    s_lshl_b32 s62, s20, 11
    s_add_u32 s62, s62, {WS_RS}
    s_and_b32 s32, s2, 7
    s_lshl_b32 s32, s32, 1
    s_bfe_u32 s33, s2, 0x10004
    s_add_u32 s32, s32, s33
    s_bfe_u32 s33, s2, 0x10003
    s_lshr_b32 s48, s2, 5
    s_lshl_b32 s54, s32, 2
    s_add_u32 s54, s54, s33
    s_mul_i32 s4, s54, {BLK}
    s_mul_i32 s5, s3, 12288
    s_add_u32 s4, s4, s5
    s_add_u32 s4, s4, {WS_HH}
    """)
    bo=[0,2,64,66]
    for s in range(4):
        for i in range(3):
            if s or i: k(f"s_add_u32 s{4+3*s+i}, s4, {bo[s]*BLK+4096*i}")
    k(f"""
    s_mul_i32 s16, s54, 20480
    s_mul_i32 s17, s48, 160
    s_add_u32 s16, s16, s17
    s_lshl_b32 s24, s54, 9
    s_add_u32 s24, s24, {WS_RS}
    """)
    for s in range(1,4): k(f"s_add_u32 s{16+s}, s16, {bo[s]*20480}\ns_add_u32 s{24+s}, s24, {bo[s]*512}")
    k(f"""
    s_lshr_b32 s28, s3, 1
    s_lshl_b32 s28, s28, 4
    s_add_u32 s28, s28, s32
    s_mul_i32 s28, s28, 81920
    s_mul_i32 s29, s48, 10240
    s_add_u32 s28, s28, s29
    s_and_b32 s29, s3, 1
    s_mul_i32 s29, s29, 5120
    s_add_u32 s28, s28, s29
    s_add_u32 s28, s28, {WS_HB}
    s_mul_i32 s29, s3, 5120
    v_add_u32 v10, s29, v14
    s_add_u32 s29, s29, 40960
    s_lshl_b32 s39, s3, 8
    v_lshlrev_b32 v9, 4, v19
    v_lshl_add_u32 v9, v16, 11, v9
    v_add_u32 v9, s39, v9
    s_lshl_b32 s39, s3, 3
    v_lshl_add_u32 v20, v16, 5, s39
    s_lshl_b32 s39, s3, 2
    s_add_u32 s39, s39, 64
    v_mov_b32 v22, s39
    v_cmp_gt_u32 vcc, 32, v0
    s_lshl_b32 s39, s33, 5
    s_add_u32 s39, s39, 40960
    v_cndmask_b32 v20, v22, v20, vcc
    v_add_u32 v20, v20, v17
    v_lshlrev_b32 v20, 7, v20
    v_lshl_add_u32 v20, v18, 3, v20
    s_mov_b32 s46, {NB_ACT}
    s_mov_b32 s47, 0x00020000
    s_waitcnt lgkmcnt(0)
    """)
    vm.wait("H6")
    k(f"s_barrier\nbuffer_store_dword v12, v11, {WS}, s49 offen sc1"); vm.issue()
    k("v_add_u32 v11, s39, v20")
    def xread(g):
        q,r=divmod(g,40); ks=r>>1; b=2*(q&1)+(g&1); slab=q>>1
        if r%8==0 and (q&1)==0:
            vm.wait(("S",slab,r//8)); k("s_barrier")
        if ks==(12 if slab else 16): k(f"v_add_u32 v{1+b}, 0x10000, v{1+b}")
        off = ks*4096 - (65536 if ks>=16 else 0) if slab==0 else 16384+ks*4096-(65536 if ks>=12 else 0)
        d=RING+4*(g%8)
        k(f"ds_read_b64_tr_b16 v[{d}:{d+1}], v{1+b} offset:{off}"); lg.issue()
        k(f"ds_read_b64_tr_b16 v[{d+2}:{d+3}], v{1+b} offset:{off+512}"); lg.issue(("X",g))
        if r%8==0 and (q&1)==0:
            t=5*slab+r//8
            S.add([("i",lg,f"ds_read_b64_tr_b16 v[{SX}:{SX+1}], v7",None),("i",lg,f"ds_read_b64_tr_b16 v[{SX+2}:{SX+3}], v7 offset:512",("SX",t)),
                   "v_add_u32 v7, 0x4000, v7"])
    def smf(t):
        c=lambda r: "0" if t%5==0 else f"v[{r}:{r+3}]"
        return [("w",lg,("SX",t)), f"{MF} v[{SA}:{SA+3}], v[{ONES}:{ONES+3}], v[{SX}:{SX+3}], {c(SA)}",
                f"{MF} v[{SB}:{SB+3}], v[{SX}:{SX+3}], v[{SX}:{SX+3}], {c(SB)}"]
    def sfin(slab):
        return [f"v_cndmask_b32 v{SB}, v{SB}, v{SB+1}, s[36:37]", f"v_cndmask_b32 v{SB}, v{SB}, v{SB+2}, s[40:41]",
                f"v_cndmask_b32 v{SB}, v{SB}, v{SB+3}, s[42:43]", f"v_cndmask_b32 v{SB}, v{SA}, v{SB}, s[34:35]",
                ("i",vm,f"buffer_store_dword v{SB}, v15, {WS}, s62 offen sc1",None), "s_add_u32 s62, s62, 32768"]
    def epi(q,nop=False):
        def one(c):
            return [f"v_pk_mul_f32 v[{c}:{c+1}], v[{c}:{c+1}], v[{c+4}:{c+5}]", f"v_pk_mul_f32 v[{c+2}:{c+3}], v[{c+2}:{c+3}], v[{c+6}:{c+7}]",
                f"v_permlane32_swap_b32 v{c+8}, v{c+10}", f"v_permlane32_swap_b32 v{c+9}, v{c+11}",
                f"v_cvt_pk_bf16_f32 v{c+4}, v{c}, v{c+1}", f"v_cvt_pk_bf16_f32 v{c+5}, v{c+2}, v{c+3}",
                f"v_pk_mul_f32 v[{c+8}:{c+9}], v[{c+8}:{c+9}], v[{c+10}:{c+11}]",
                f"v_cvt_pk_bf16_f32 v{c+6}, v{c+8}, v{c+9}",
                f"v_permlane16_swap_b32 v{c+4}, v{c+5}", f"v_permlane16_swap_b32 v{c+6}, v{c+7}",
                f"v_permlane32_swap_b32 v{c+4}, v{c+6}", f"v_permlane32_swap_b32 v{c+5}, v{c+7}"]
        c=72 if q&1 else 48
        o=[]
        for i,(x,y) in enumerate(zip(one(c),one(c+12))):
            if nop and i==10: o.append("s_nop 0")
            o+=[x,y]
        for h in range(2):
            d=c+12*h+4
            o+=[("i",vm,f"buffer_store_dwordx4 v[{d}:{d+3}], v8, {WS}, s52 offen sc1",("HS",q,h)), f"s_add_u32 s52, s52, {BLK*(61 if (q==1 and h==1) else 1)}"]
        return o
    bufn=[0,32,44,0]
    def hhl(s,j): return f"buffer_load_dwordx4 {rr(wreg(bufn[s]+j))}, v14, {WS}, s{4+3*s+(j>>2)} offen offset:{1024*(j&3)} sc1"
    def hhload(s,a=0,b=12): return [("i",vm,hhl(s,j),("HH",s,j)) for j in range(a,b)]
    RSR=[68,70,92,94]
    def rsl(s): return f"buffer_load_dwordx2 v[{RSR[s]}:{RSR[s]+1}], v13, {WS}, s{24+s} offen sc1"
    def rsload(s): return [("i",vm,rsl(s),("RS",s))]
    wd=lambda a,b: sum([wdload(vm,n,14) for n in range(a,b)],[])
    plan={i:[] for i in range(161)}
    for t in range(10):
        gb=80*(t//5)+8*(t%5)-5
        plan[max(gb,-2)+3]+=smf(t)
    plan[E_("H1P",16)]+=[("i",vm,f"buffer_load_dword v12, v13, {WS}, s31 offen sc1","H1p")]
    def h1chk():
        vm.wait("H1p"); check_or_poll(k,13,"s31",12); P.stamp(9)
    late=[ "v_and_b32 v12, 15, v0","v_lshrrev_b32 v13, 4, v0", "v_mul_u32_u24 v6, 1280, v12", "s_lshl_b32 s39, s3, 4",
           "v_lshl_add_u32 v5, v13, 6, v6", "v_add_u32 v5, s39, v5", "s_lshl_b32 s39, s3, 3", "s_add_u32 s39, s39, 128", "v_add_u32 v6, s39, v6",
           "v_cmp_gt_u32 vcc, 2, v13", "v_cmp_eq_u32 s[54:55], 2, v13", "v_lshlrev_b32 v13, 3, v13", "v_lshl_add_u32 v13, v12, 5, v13",
           f"v_mov_b32 v12, {OOB}", "v_cndmask_b32 v5, v12, v5, vcc", "v_cndmask_b32 v6, v12, v6, s[54:55]"]
    H1C=E_("H1C",42)
    plan[H1C]+=[("x",h1chk)]+dma(1)+sfin(0)+epi(0)+late
    plan[E_("WDA",64)]+=wd(16,40)
    plan[81]+=epi(1)
    res=["s_mov_b32 m0, s29","s_add_u32 s29, s29, 4096"]+[("i",vm,f"buffer_load_dwordx4 v14, {WS}, s28 offen offset:{1024*i} sc1 lds",None) for i in range(4)]
    res+=["s_mov_b32 m0, s29","s_add_u32 s28, s28, 4096",("i",vm,f"buffer_load_dwordx4 v14, {WS}, s28 offen sc1 lds","RES")]
    plan[88]+=res
    plan[114]+=sfin(1)
    plan[121]+=epi(2)
    plan[128]+=hhload(0)
    for n in range(40,60):
        ks=(n-28)//3
        plan[122+2*ks]+=wdload(vm,n,14)
    plan[134]+=rsload(0)+rsload(1)
    for j in range(12):
        plan[max(122+2*((32+j)//3),E_("S1L",144))]+=hhload(1,j,j+1)
    for g in range(5): xread(g)
    P.stamp(8)
    for gi in range(160):
        S.add(plan[gi])
        q,r=divmod(gi,40); ks=r>>1
        acc=(72 if q&1 else 48)+12*(gi&1); d=RING+4*(gi%8)
        if gi in (80,120): assert not any(isinstance(x,tuple) and x[0]=="i" and isinstance(x[3],tuple) and x[3][0]=="HS" and x[3][1]==q-2 for x in S.q)
        lg.wait(("X",gi))
        for a in range(3):
            c=acc+4*a
            k(f"{MF} v[{c}:{c+3}], {rr(wreg(3*ks+a))}, v[{d}:{d+3}], {'0' if ks==0 else f'v[{c}:{c+3}]'}")
            if a==0:
                if gi+5<160: xread(gi+5)
                else: S.pop(2)
            else: S.pop(2)
    S.flush()
    P.stamp(10)
    k("s_nop 7")
    S.add(epi(3,True)); S.flush()
    if STOP<=3:
        k("s_branch FZ_FIN"); return
    AC=[48,72]
    slow=[]
    def mm(s,j,a):
        c=AC[s&1]+4*a
        return f"{MF} v[{c}:{c+3}], {rr(wdreg(5*j+a))}, {rr(wreg(bufn[s]+j))}, {'0' if j==0 else f'v[{c}:{c+3}]'}"
    def chk(s):
        def f():
            c=AC[s&1]
            k(f"v_cmp_u_f32 vcc, v{c}, v{c}\ns_cbranch_vccnz FZ_SL{s}\nFZ_SB{s}:")
            o=[f"FZ_SL{s}:"]+[hhl(s,j) for j in range(12)]+["s_waitcnt vmcnt(0)"]+[mm(s,j,0) for j in range(12)]
            o+=["s_nop 7","s_nop 1",f"v_cmp_u_f32 vcc, v{c}, v{c}",f"s_cbranch_vccz FZ_SO{s}","s_sub_u32 s61, s61, 1",f"s_cbranch_scc0 FZ_SL{s}","s_mov_b32 s61, 0",f"FZ_SO{s}:"]
            o+=[mm(s,j,a) for j in range(12) for a in range(1,5)]+["s_nop 7","s_nop 1",f"s_branch FZ_SB{s}"]
            slow.extend(o)
        return ("x",f)
    def rsred(s):
        a=RSR[s]; b=a+1
        def f():
            vm.wait(("RS",s))
            k(f"v_cmp_u_f32 vcc, v{a}, v{b}\ns_cbranch_vccnz FZ_RL{s}\nFZ_RB{s}:")
            slow.extend([f"FZ_RL{s}:",rsl(s),"s_waitcnt vmcnt(0)",f"v_cmp_u_f32 vcc, v{a}, v{b}",f"s_cbranch_vccz FZ_RB{s}","s_sub_u32 s61, s61, 1",
                         f"s_cbranch_scc0 FZ_RL{s}","s_mov_b32 s61, 0",f"s_branch FZ_RB{s}"])
        K=hex(f2u(1.0/640))
        return [("x",f), f"v_permlane16_swap_b32 v{a}, v{b}", f"v_add_f32 v{a}, v{a}, v{b}", f"v_mov_b32 v{b}, v{a}", "s_nop 1",
                f"v_permlane32_swap_b32 v{a}, v{b}", f"v_add_f32 v{a}, v{a}, v{b}", f"v_mov_b32 v{b}, v{a}", "s_nop 1",
                f"v_permlane16_swap_b32 v{a}, v{b}", f"v_mul_f32 v{a}, {K}, v{a}", f"v_mul_f32 v{b}, {K}, v{b}",
                f"v_fma_f32 v{b}, -v{a}, v{a}, v{b}", f"v_max_f32 v{b}, 0, v{b}", f"v_add_f32 v{b}, {hex(f2u(1e-5))}, v{b}",
                f"v_rcp_f32 v{a}, v{b}", "s_nop 0", f"v_mov_b32 v{b}, v{a}"]
    def fin(s,gap):
        c=AC[s&1]; po=(s&1)*20480; sc=RSR[s]
        o=[chk(s)]+[("i",lg,f"ds_write_b128 v10, v[{c+4*a}:{c+4*a+3}] offset:{po+1024*a}",("pw",s)) for a in range(5)]
        ro=10240*(s>>1)+64*(s&1)
        if s==0: o+=[("w",vm,"RES")]
        o+=[None]*gap+[("w",lg,("pw",s)),"s_barrier"]
        o+=[("i",lg,f"ds_read_b64_tr_b16 v[96:97], v11 offset:{ro}",None),("i",lg,f"ds_read_b64_tr_b16 v[98:99], v11 offset:{ro+512}",("rr",s))]
        for kq in range(4):
            for h in range(2):
                d=16+8*kq+4*h
                o.append(("i",lg,f"ds_read_b128 v[{d}:{d+3}], v9 offset:{po+5120*kq+1024*h}",("pr",s,kq)))
        o+=[None]*gap+[("w",lg,("rr",s))]
        for i in range(4): o+=[f"v_lshlrev_b32 v{100+2*i}, 16, v{96+i}", f"v_and_b32 v{101+2*i}, s38, v{96+i}"]
        pa=lambda d,x: f"v_pk_add_f32 v[{d}:{d+1}], v[{d}:{d+1}], v[{x}:{x+1}]"
        o+=[("w",lg,("pr",s,1))]+[pa(16+2*i,24+2*i) for i in range(4)]
        o+=[("w",lg,("pr",s,3))]+[pa(32+2*i,40+2*i) for i in range(4)]+[pa(16+2*i,32+2*i) for i in range(4)]
        o+=[f"v_pk_fma_f32 v[{16+2*i}:{17+2*i}], v[{16+2*i}:{17+2*i}], v[{sc}:{sc+1}], v[{100+2*i}:{101+2*i}]" for i in range(4)]
        o+=[f"v_cvt_pk_bf16_f32 v{96+i}, v{16+2*i}, v{17+2*i}" for i in range(4)]
        OM=os.environ.get("OM","")
        o+=[("i",vm,f"buffer_store_dwordx4 v[96:99], v5, s[44:47], s{16+s} offen {OM}",None),("i",vm,f"buffer_store_dwordx2 v[96:97], v6, s[44:47], s{16+s} offen {OM}",None)]
        return o
    p2={i:[] for i in range(240)}
    p2[2]+=rsred(0)
    p2[E_("S2L",20)]+=rsload(2)+rsload(3)+hhload(2)
    for s in range(1,4):
        p2[60*s+3]+=fin(s-1,4)+rsred(s)
    p2[60+E_("S3L",40)]+=hhload(3)
    for s in range(4):
        for j in range(12):
            for a in range(5):
                i=60*s+5*j+a
                S.add(p2[i])
                if a==0: S.until(vm,("HH",s,j)); vm.wait(("HH",s,j))
                if s==0 and 5*j+a>=8: vm.wait(("Wd",5*j+a))
                k(mm(s,j,a))
                S.pop(2)
        if s==0: P.stamp(11)
    S.flush()
    P.stamp(12)
    k("s_nop 3")
    S.add(fin(3,0)); S.flush()
    k(f"s_cmp_eq_u32 s2, 255\ns_cbranch_scc0 FZ_FIN\ns_mov_b32 s32, {WS_FL}")
    post_flag(k,"s32",4,3)
    k("s_branch FZ_FIN")
    k("\n".join(slow))
```

```python
from asmgen import *
import struct, os
def f2u(f): return struct.unpack("<I", struct.pack("<f", f))[0]
WS_KVT=0; WS_QT=0x280000; WS_A=0x500000; WS_B=0x502000; WS_HB=0x600000
WS_WP=0x900000; WS_WD=0xD00000; WS_HH=0x1000000; WS_RS=0x1600000; WS_FL=0x1780000; WS_SZ=0x1800000
FL_F0=WS_FL+0x1000; FL_FD=WS_FL+0xC000; FL_H0=WS_FL+0x10000; FL_H1=WS_FL+0x18000
MS=192*10240
NB_ACT=2048*1280
WS="s[56:59]"
STOP=int(os.environ.get("STOP","99"))

class Cnt:
    def __init__(self, k, name, maxv):
        self.k, self.name, self.maxv = k, name, maxv
        self.n = 0; self.tags = {}; self.done = 0
    def issue(self, tag=None):
        self.n += 1
        if tag is not None: self.tags[tag] = self.n
    def need(self, tag):
        pos = self.tags[tag]
        if pos <= self.done: return None
        c = min(self.n - pos, self.maxv)
        self.done = self.n - c
        return f"s_waitcnt {self.name}({c})"
    def wait(self, tag):
        s = self.need(tag)
        if s: self.k(s)
    def drained(self): self.done = self.n

def dpp_allreduce16(k, v):
    for r in (8,4,2,1):
        k(f"s_nop 1\nv_add_f32_dpp v{v}, v{v}, v{v} row_ror:{r} row_mask:0xf bank_mask:0xf")

def post_flag(k, soff, vt, va, wave0=True):
    L=k.label("pf")
    if wave0: k(f"s_cmp_eq_u32 s3, 0\ns_cbranch_scc0 {L}")
    k(f"""v_mov_b32 v{vt}, s60
    v_mov_b32 v{va}, 0
    s_mov_b64 exec, 1
    buffer_store_dword v{vt}, v{va}, {WS}, {soff} offen sc1
    s_mov_b64 exec, -1""")
    if wave0: k(f"{L}:")

def poll(k, va, soff, vt, sleep=0):
    L=k.label("pl"); D=k.label("pd")
    k(f"""{L}:
    buffer_load_dword v{vt}, v{va}, {WS}, {soff} offen sc1
    s_waitcnt vmcnt(0)
    v_cmp_ne_u32 vcc, s60, v{vt}
    s_cbranch_vccz {D}
    {f"s_sleep {sleep}" if sleep else ""}
    s_sub_u32 s61, s61, 1
    s_cbranch_scc0 {L}
    s_mov_b32 s61, 0
    {D}:""")

def check_or_poll(k, va, soff, vt):
    D=k.label("cd")
    k(f"v_cmp_ne_u32 vcc, s60, v{vt}\ns_cbranch_vccz {D}")
    poll(k, va, soff, vt)
    k(f"{D}:")

class Stream:
    def __init__(self, k): self.k=k; self.q=[]
    def add(self, items): self.q += items
    def pop(self, n=1):
        while n>0 and self.q:
            x=self.q.pop(0)
            if x is None: n-=1; continue
            if isinstance(x,tuple):
                if x[0]=="w": x[1].wait(x[2]); continue
                if x[0]=="x": x[1](); n-=1; continue
                if x[0]=="0": self.k(x[1]); continue
                self.k(x[2]); x[1].issue(x[3])
            else: self.k(x)
            n-=1
    def until(self, cnt, tag):
        while tag not in cnt.tags:
            assert self.q, ("missing", tag)
            self.pop(1)
    def flush(self): self.pop(100000)
```

```python
import sys
from fzc import *
import fz1
k = Kern(NAME+"_kernel", (256,1,1), 256, 163840, vgpr=256, agpr=256, sgpr=64)
P=Prof(k,0,4)
fz1.prologue(k,P)
fz1.tile(k,P)
if STOP<=1:
    k(f"s_lshl_b32 s34, s2, 7\ns_add_u32 s34, s34, {FL_F0}\ns_waitcnt vmcnt(0)\ns_barrier")
    post_flag(k,"s34",4,5)
    k("s_branch FZ_FIN")
else:
    import fz2
    fz2.conv(k,P)
fz1.arole(k,P)
fz1.stats(k,P)
k("FZ_JOIN:")
if STOP>1:
    fz2.join(k,P)
k("FZ_FIN:")
P.end()
k("FZ_END:\ns_endpgm")
o=build_file([k]).replace("; @launch kernel="+NAME+"_kernel","; @launch")
open(sys.argv[1] if len(sys.argv)>1 else "fz.s","w").write(o)
```

```python
from fzc import *
WAVE_LDS = 4*4160 + 4608
CB = 163840 - 4*WAVE_LDS
ASW=int(os.environ.get('ASW','0'))
FEARLY=int(os.environ.get('FEARLY','1')); FNT=int(os.environ.get('FNT','0'))
FPOST=int(os.environ.get('FPOST','0')); QL=int(os.environ.get('QL','0'))
def fdma_(k,c):
    k(f"s_add_u32 m0, s46, {4160*c+32}\ns_nop 0")
    for i in range(4):
        s = "s[52:55]" if c&1 else "s[48:51]"
        k(f"buffer_load_dwordx4 v{124+c}, {s}, 0 offen offset:{1024*i}"+(" nt" if c==0 and FNT else "")+" lds")

def prologue(k,P):
    k("s_cmp_ge_u32 s2, 256\ns_cbranch_scc1 FZ_END"); P.start()
    k("""
    s_load_dwordx4 s[4:7], s[0:1], 0
    s_load_dwordx4 s[8:11], s[0:1], 16
    s_load_dwordx4 s[12:15], s[0:1], 32
    s_load_dwordx2 s[56:57], s[0:1], 96
    s_load_dwordx4 s[40:43], s[0:1], 56
    s_load_dwordx2 s[44:45], s[0:1], 72
    v_lshrrev_b32 v3, 6, v0
    v_and_b32 v1, 15, v0
    v_lshrrev_b32 v2, 4, v0
    v_readfirstlane_b32 s3, v3
    s_mov_b32 s61, 20000
    s_cmp_ge_u32 s2, 208
    s_cbranch_scc1 FZ_STATS
    s_cmp_ge_u32 s2, 160
    s_cbranch_scc1 FZ_AROLE
    """)
def wsrd(k):
    k(f"s_mov_b32 s58, {WS_SZ}\ns_mov_b32 s59, 0x00020000\ns_mov_b32 s60, {WS_FL}\ns_load_dword s60, s[56:57], s60")
def mktag(k):
    k("s_waitcnt lgkmcnt(0)\ns_mul_i32 s60, s60, 1664525\ns_add_u32 s60, s60, 1013904223")

KILL=int(os.environ.get('KILL','0'))
def tile(k,P):
    if KILL&1: k("s_branch FZ_FIN")
    k(f"""
    s_and_b32 s32, s2, 15
    s_lshr_b32 s33, s2, 4
    s_mul_i32 s34, s32, 128*1280
    s_lshl_b32 s36, s33, 7
    s_add_u32 s34, s34, s36
    v_mul_u32_u24 v3, 8*1280, v2
    v_lshlrev_b32 v4, 3, v1
    v_add3_u32 v3, v3, v4, s34
    v_add_u32 v4, 4*1280, v3
    v_subrev_u32 v5, 3*1280, v3
    s_lshl_b32 s36, s33, 9
    v_lshlrev_b32 v6, 5, v1
    v_add_u32 v6, s36, v6
    s_lshl_b32 s35, s2, 2
    s_add_u32 s35, s35, s3
    s_lshl_b32 s36, s35, 12
    s_lshr_b32 s37, s35, 1
    s_lshl_b32 s37, s37, 2
    s_waitcnt lgkmcnt(0)
    """)
    P.stamp(1,5)
    k.srd(20,6,NB_ACT); k.srd(28,10,640*8)
    vm=Cnt(k,"vmcnt",63)
    KR=8; VR=30; QR=46; SH=62
    k(f"buffer_load_dwordx4 v[{SH}:{SH+3}], v6, s[28:31], 0 offen"); vm.issue()
    k(f"buffer_load_dwordx4 v[{SH+4}:{SH+7}], v6, s[28:31], 0 offen offset:16"); vm.issue("sh")
    def rowaddr(r):
        if r < 0: return "v5", (r+3)*1280
        if r < 4: return "v3", r*1280
        return "v4", (r-4)*1280
    for r in range(-3,8):
        a,o = rowaddr(r); k(f"buffer_load_dwordx2 v[{KR+2*(r+3)}:{KR+2*(r+3)+1}], {a}, s[20:23], 0 offen offset:{o} nt"); vm.issue("k")
    P.stamp(2,5)
    k.srd(24,8,NB_ACT)
    for r in range(8):
        a,o = rowaddr(r); k(f"buffer_load_dwordx2 v[{VR+2*r}:{VR+2*r+1}], {a}, s[24:27], 0 offen offset:{o} nt"); vm.issue("v")
    P.stamp(3,5)
    k.srd(16,4,NB_ACT)
    def qld():
        for r in range(8):
            a,o = rowaddr(r); k(f"buffer_load_dwordx2 v[{QR+2*r}:{QR+2*r+1}], {a}, s[16:19], 0 offen offset:{o} nt"); vm.issue("q")
    if QL==0: qld()
    P.stamp(4,5)
    wsrd(k)
    k(f"""
    s_load_dword s47, s[14:15], s37
    s_add_u32 s48, s12, s36
    s_addc_u32 s49, s13, 0
    s_mul_i32 s46, s3, {WAVE_LDS}
    s_add_u32 s46, s46, {CB}
    v_and_b32 v124, 63, v0
    v_lshlrev_b32 v124, 4, v124
    v_add_u32 v125, 2, v124
    v_add_u32 v126, 4, v124
    v_add_u32 v127, 6, v124
    """)
    k.srd(48,48,4096); k.srd(52,48,4094)
    def fdma(c):
        k(f"s_add_u32 m0, s46, {4160*c+32}\ns_nop 0")
        for i in range(4):
            s = "s[52:55]" if c&1 else "s[48:51]"
            k(f"buffer_load_dwordx4 v{124+c}, {s}, 0 offen offset:{1024*i}"+(" nt" if c==0 and FNT else "")+" lds"); vm.issue()
    for c in range(FEARLY): fdma(c)
    k(f"""
    s_lshl_b32 s36, s33, 18
    s_lshl_b32 s37, s32, 8
    s_add_u32 s36, s36, s37
    v_lshlrev_b32 v6, 14, v1
    v_lshlrev_b32 v7, 4, v2
    v_add3_u32 v6, v6, v7, s36
    v_add_u32 v7, 0x2000, v6
    s_mov_b32 s38, 0xffff0000
    s_mov_b32 s39, {WS_QT}
    s_mov_b32 s40, 0x05040100
    s_mov_b32 s41, 0x07060302
    s_mov_b32 s42, 4096
    s_mov_b32 s43, {WS_QT+4096}
    """)
    CF=70; KF=86; AC=108
    P.stamp(1); P.stamp(5,5); vm.wait("sh"); P.stamp(6,5)
    for c in range(4):
        for j in range(4):
            src = SH + 2*c + (j>>1)
            if j&1: k(f"v_and_b32 v{CF+4*j+c}, s38, v{src}")
            else:   k(f"v_lshlrev_b32 v{CF+4*j+c}, 16, v{src}")
    vm.wait("k"); P.stamp(8,5)
    if QL==1: qld()
    for p in range(2):
        for r in range(11):
            k(f"v_lshlrev_b32 v{KF+2*r}, 16, v{KR+2*r+p}\nv_and_b32 v{KF+2*r+1}, s38, v{KR+2*r+p}")
        for r in range(8):
            for j in range(4):
                a = KF+2*(r+3-j); c = CF+4*j+2*p; d = AC+2*r
                if j==0: k(f"v_pk_mul_f32 v[{d}:{d+1}], v[{a}:{a+1}], v[{c}:{c+1}]")
                else:    k(f"v_pk_fma_f32 v[{d}:{d+1}], v[{a}:{a+1}], v[{c}:{c+1}], v[{d}:{d+1}]")
        vm.wait("v")
        for r in range(8):
            k(f"v_lshlrev_b32 v{KF+2*r}, 16, v{VR+2*r+p}\nv_and_b32 v{KF+2*r+1}, s38, v{VR+2*r+p}")
        for r in range(8):
            d=AC+2*r; a=KF+2*r
            k(f"v_pk_mul_f32 v[{d}:{d+1}], v[{d}:{d+1}], v[{a}:{a+1}]")
        for h in range(2):
            o = SH+4*h
            for m in range(4):
                k(f"v_cvt_pk_bf16_f32 v{o+m}, v{AC+2*(7-2*m)+h}, v{AC+2*(6-2*m)+h}")
            c = 2*p+h
            ad = "v6" if c<2 else "v7"
            k(f"buffer_store_dwordx4 v[{o}:{o+3}], {ad}, {WS}, {'s42' if c&1 else '0'} offen sc1"); vm.issue()
        if p==0: k("s_nop 1")
    P.stamp(9,5); vm.wait("q"); P.stamp(10,5)
    for c in range(4):
        o = KF+4*c
        for m in range(4):
            k(f"v_perm_b32 v{o+m}, v{QR+2*(2*m+1)+(c>>1)}, v{QR+2*(2*m)+(c>>1)}, s{41 if c&1 else 40}")
        ad = "v6" if c<2 else "v7"
        k(f"buffer_store_dwordx4 v[{o}:{o+3}], {ad}, {WS}, s{43 if c&1 else 39} offen sc1")
    if not FPOST:
        for c in range(FEARLY,4): fdma(c)
    P.stamp(2)
    mktag(k)

def arole(k,P):
    k(f"""
    FZ_AROLE:
    s_lshr_b32 s63, s2, 3
    s_mul_i32 s63, s63, {ASW}
    s_add_u32 s63, s63, s2
    s_and_b32 s63, s63, 7
    s_andn2_b32 s32, s2, 7
    s_or_b32 s63, s63, s32
    s_sub_u32 s32, s63, 160
    s_cmp_ge_u32 s32, 24
    s_cselect_b32 s33, 1, 0
    s_mul_i32 s34, s33, 24
    s_sub_u32 s32, s32, s34
    v_and_b32 v0, 63, v0
    v_lshrrev_b32 v3, 3, v0
    v_bfe_u32 v4, v0, 1, 2
    v_and_b32 v5, 3, v3
    v_xor_b32 v4, v4, v5
    s_and_b32 s34, s3, 1
    v_xor_b32 v4, s34, v4
    v_mul_u32_u24 v3, 3072, v3
    v_lshl_add_u32 v3, v4, 5, v3
    v_and_b32 v4, 1, v0
    v_lshl_add_u32 v3, v4, 4, v3
    s_mul_i32 s34, s3, {8*3072}
    s_lshl_b32 s35, s32, 7
    s_add_u32 s34, s34, s35
    s_lshl_b32 s35, s3, 10
    s_cmp_eq_u32 s33, 1
    s_waitcnt lgkmcnt(0)
    s_cselect_b32 s40, s42, s40
    s_cselect_b32 s41, s43, s41
    """)
    P.stamp(1,5)
    k.srd(20,40,640*3072)
    AORD=int(os.environ.get('AORD','0')); ANT=os.environ.get('ANT','nt').replace('_',' ')
    order=list(range(20))
    if AORD&2: order=[(5*i)%20+(i//4) for i in range(20)]
    if AORD&4: order=[(10*i)%20+(i//2) for i in range(20)]
    if AORD&1:
        k(f"""s_and_b32 s36, s3, 1
        s_lshl_b32 s36, s36, 5
        v_xor_b32 v3, s36, v3
        v_xor_b32 v9, 32, v3
        s_mul_i32 s34, s3, {160*3072}
        s_lshl_b32 s35, s32, 7
        s_add_u32 s34, s34, s35
        s_mul_i32 s35, s3, 20480""")
    st=(8*3072,1024) if AORD&1 else (32*3072,4096)
    for ks in order:
        k(f"s_add_u32 m0, s35, {st[1]*ks}\ns_add_u32 s36, s34, {st[0]*ks}\nbuffer_load_dwordx4 v{9 if (AORD&1 and ks&1) else 3}, s[20:23], s36 offen {ANT} lds")
    P.stamp(2,5)
    wsrd(k)
    k(f"""
    v_lshrrev_b32 v4, 4, v0
    v_bfe_u32 v5, v0, 2, 2
    v_lshl_add_u32 v6, v4, 3, v5
    v_lshlrev_b32 v6, 7, v6
    v_and_b32 v7, 1, v4
    v_xor_b32 v7, v7, v5
    v_xor_b32 v7, s3, v7
    v_lshl_add_u32 v6, v7, 5, v6
    v_and_b32 v7, 3, v0
    v_lshl_add_u32 v5, v7, 3, v6
    v_add_u32 v8, 0x10000, v5
    v_bfe_u32 v6, v0, 3, 1
    v_mul_u32_u24 v6, 10240, v6
    v_lshl_add_u32 v6, v4, 7, v6
    v_and_b32 v7, 7, v0
    v_lshl_add_u32 v6, v7, 4, v6
    s_lshl_b32 s34, s32, 2
    s_add_u32 s34, s34, s3
    s_mul_i32 s34, s34, 20480
    s_mul_i32 s35, s33, {MS}
    s_add_u32 s34, s34, s35
    s_add_u32 s34, s34, {WS_WP}
    v_mov_b32 v12, 0x3f803f80
    v_mov_b32 v13, v12
    v_mov_b32 v14, v12
    v_mov_b32 v15, v12
    s_mov_b32 s38, 0xffff0000
    """)
    mktag(k)
    P.stamp(1)
    k("s_waitcnt vmcnt(0)\ns_barrier")
    P.stamp(2)
    F=16; SM=96; T=100
    lg=Cnt(k,"lgkmcnt",15)
    def rd(ks):
        va,off=("v5",ks*4096) if ks<16 else ("v8",ks*4096-65536)
        k(f"ds_read_b64_tr_b16 v[{F+4*ks}:{F+4*ks+1}], {va} offset:{off}"); lg.issue()
        k(f"ds_read_b64_tr_b16 v[{F+4*ks+2}:{F+4*ks+3}], {va} offset:{off+512}"); lg.issue(ks)
    for ks in range(6): rd(ks)
    for ks in range(20):
        if ks+6<20: rd(ks+6)
        lg.wait(ks)
        k(f"v_mfma_f32_16x16x32_bf16 v[{SM}:{SM+3}], v[12:15], v[{F+4*ks}:{F+4*ks+3}], {'0' if ks==0 else f'v[{SM}:{SM+3}]'}")
    k(f"s_nop 7\ns_nop 1\nv_mul_f32 v{SM}, {hex(f2u(-1.0/640))}, v{SM}\nv_mov_b32 v{SM+1}, v{SM}")
    for ks in range(20):
        t=T+8*(ks&1)
        for j in range(4):
            k(f"v_lshlrev_b32 v{t+2*j}, 16, v{F+4*ks+j}\nv_and_b32 v{t+2*j+1}, s38, v{F+4*ks+j}")
        for j in range(4):
            k(f"v_pk_add_f32 v[{t+2*j}:{t+2*j+1}], v[{t+2*j}:{t+2*j+1}], v[{SM}:{SM+1}]")
        for j in range(4):
            k(f"v_cvt_pk_bf16_f32 v{F+4*ks+j}, v{t+2*j}, v{t+2*j+1}")
        k(f"buffer_store_dwordx4 v[{F+4*ks}:{F+4*ks+3}], v6, {WS}, s34 offen offset:{512*(ks&7)} sc1")
        if (ks&7)==7: k("s_add_u32 s34, s34, 4096")
    P.stamp(3)
    k(f"s_lshl_b32 s34, s63, 7\ns_add_u32 s34, s34, {FL_F0}\ns_waitcnt vmcnt(0)\ns_barrier")
    post_flag(k,"s34",4,5)
    P.stamp(4)
    k("s_branch FZ_JOIN")

def stats(k,P):
    k(f"""
    FZ_STATS:
    {'s_branch FZ_FIN' if KILL&2 else ''}
    s_sub_u32 s32, s2, 208
    s_mul_i32 s33, s32, 48
    v_add_u32 v3, s33, v2
    v_mul_u32_u24 v3, 1280, v3
    v_lshl_add_u32 v3, v1, 4, v3
    s_mov_b32 s38, 0xffff0000
    s_mov_b32 s34, {16*1280}
    s_mov_b32 s35, {32*1280}
    s_waitcnt lgkmcnt(0)
    """)
    k.srd(16,4,NB_ACT)
    R=8; X=72
    vm=Cnt(k,"vmcnt",63)
    for p in range(3):
        for i in range(5):
            r=R+20*p+4*i
            k(f"buffer_load_dwordx4 v[{r}:{r+3}], v3, s[16:19], {['0','s34','s35'][p]} offen offset:{256*i} nt"); vm.issue((p,i))
    wsrd(k)
    k("v_lshlrev_b32 v2, 2, v2\nv_cmp_eq_u32 s[36:37], 0, v1\nv_and_b32 v0, 63, v0")
    for p in range(3):
        for i in range(5):
            vm.wait((p,i))
            for j in range(4):
                s=R+20*p+4*i+j; d=X+2*(4*i+j)
                k(f"v_lshlrev_b32 v{d}, 16, v{s}\nv_and_b32 v{d+1}, s38, v{s}")
        k(f"v_pk_add_f32 v[4:5], v[{X}:{X+1}], v[{X+2}:{X+3}]")
        k(f"v_pk_add_f32 v[6:7], v[{X+4}:{X+5}], v[{X+6}:{X+7}]")
        for i in range(4,20,2):
            k(f"v_pk_add_f32 v[4:5], v[4:5], v[{X+2*i}:{X+2*i+1}]")
            k(f"v_pk_add_f32 v[6:7], v[6:7], v[{X+2*i+2}:{X+2*i+3}]")
        k("v_pk_add_f32 v[4:5], v[4:5], v[6:7]\nv_add_f32 v4, v4, v5")
        dpp_allreduce16(k,4)
        k(f"v_mul_f32 v4, {hex(f2u(-1.0/640))}, v4\nv_mov_b32 v5, v4")
        for i in range(20):
            k(f"v_pk_add_f32 v[{X+2*i}:{X+2*i+1}], v[{X+2*i}:{X+2*i+1}], v[4:5]")
        k(f"v_pk_mul_f32 v[112:113], v[{X}:{X+1}], v[{X}:{X+1}]")
        k(f"v_pk_mul_f32 v[6:7], v[{X+2}:{X+3}], v[{X+2}:{X+3}]")
        for i in range(2,20,2):
            k(f"v_pk_fma_f32 v[112:113], v[{X+2*i}:{X+2*i+1}], v[{X+2*i}:{X+2*i+1}], v[112:113]")
            k(f"v_pk_fma_f32 v[6:7], v[{X+2*i+2}:{X+2*i+3}], v[{X+2*i+2}:{X+2*i+3}], v[6:7]")
        k("v_pk_add_f32 v[6:7], v[112:113], v[6:7]\nv_add_f32 v6, v6, v7")
        dpp_allreduce16(k,6)
        k(f"""
        v_mov_b32 v7, {hex(f2u(1e-5))}
        v_fmac_f32 v7, {hex(f2u(1.0/640))}, v6
        v_rsq_f32 v7, v7
        s_nop 0
        v_mul_f32 v4, v4, v7
        s_mov_b64 exec, s[36:37]
        ds_write_b32 v2, v7 offset:{64*p}
        ds_write_b32 v2, v4 offset:{256+64*p}
        s_mov_b64 exec, -1
        """)
    L=k.label("st")
    k(f"""
    s_mul_i32 s33, s32, 192
    v_lshlrev_b32 v3, 4, v1
    v_add_u32 v3, s33, v3
    v_cmp_gt_u32 vcc, 0x2000, v3
    v_cmp_gt_u32 s[34:35], 12, v1
    v_cmp_gt_u32 s[36:37], 32, v0
    v_lshrrev_b32 v4, 4, v0
    v_lshl_add_u32 v3, v4, 13, v3
    v_lshlrev_b32 v4, 4, v0
    s_and_b64 s[34:35], s[34:35], vcc
    s_and_b64 s[34:35], s[34:35], s[36:37]
    s_mov_b32 s33, {WS_A}
    """)
    mktag(k)
    k(f"""
    s_lshl_b32 s36, s2, 7
    s_add_u32 s36, s36, {FL_F0}
    s_barrier
    s_cmp_eq_u32 s3, 0
    s_cbranch_scc0 {L}
    ds_read_b128 v[8:11], v4
    s_waitcnt lgkmcnt(0)
    s_mov_b64 exec, s[34:35]
    buffer_store_dwordx4 v[8:11], v3, {WS}, s33 offen sc1
    s_mov_b64 exec, -1
    s_waitcnt vmcnt(0)
    """)
    post_flag(k,"s36",4,5,wave0=False)
    k(f"{L}:")
    P.stamp(2)
    LD=1024
    k(f"""
    s_cmp_lt_u32 s32, 16
    s_cbranch_scc1 FZ_JOIN
    s_sub_u32 s32, s32, 16
    s_lshr_b32 s33, s32, 1
    s_and_b32 s34, s32, 1
    s_mul_i32 s35, s33, 96
    s_mul_i32 s36, s3, 24
    s_add_u32 s35, s35, s36
    s_mul_i32 s35, s35, 1280
    s_mul_i32 s36, s34, 640
    s_add_u32 s35, s35, s36
    s_mul_i32 s36, s3, 15360
    s_add_u32 s36, s36, {LD}
    v_lshlrev_b32 v3, 4, v0
    """)
    k.srd(24,44,1536*1280)
    for i in range(15):
        k(f"""v_add_u32 v4, {64*i}, v0
        v_mul_u32_u24 v4, 205, v4
        v_lshrrev_b32 v4, 13, v4
        v_mul_u32_u24 v4, 640, v4
        v_add_u32 v{8+i}, v4, v3""")
        if (i&3)==0:
            k(f"s_mov_b32 m0, s36\ns_add_u32 s36, s36, 4096")
            if i: k("s_add_u32 s35, s35, 4096")
        k(f"buffer_load_dwordx4 v{8+i}, s[24:27], s35 offen offset:{1024*(i&3)} nt lds")
    k(f"""
    v_lshrrev_b32 v4, 4, v0
    v_bfe_u32 v5, v0, 2, 1
    v_bfe_u32 v6, v0, 3, 1
    v_lshl_add_u32 v5, v6, 2, v5
    v_and_b32 v6, 3, v0
    s_mul_i32 s35, s3, 160
    s_add_u32 s35, s35, {LD}
    """)
    AD=24
    for n in range(3):
        k(f"""
        v_add_u32 v7, {4*n}, v4
        v_mul_u32_u24 v40, 43, v7
        v_lshrrev_b32 v40, 7, v40
        v_mul_u32_u24 v41, 3, v40
        v_sub_u32 v7, v7, v41
        v_cmp_gt_u32 vcc, 2, v7
        v_lshlrev_b32 v7, 1, v7
        v_mul_u32_u24 v40, 24, v40
        v_cndmask_b32 v7, 16, v7, vcc
        v_add3_u32 v7, v7, v40, v5
        v_mov_b32 v41, 8
        v_cndmask_b32 v41, 2, v41, vcc
        v_add_u32 v41, v41, v7
        v_mul_u32_u24 v7, 640, v7
        v_mul_u32_u24 v41, 640, v41
        v_add_u32 v7, s35, v7
        v_add_u32 v41, s35, v41
        v_lshl_add_u32 v{AD+4*n}, v6, 4, v7
        v_lshl_add_u32 v{AD+4*n+1}, v6, 4, v41
        v_lshl_add_u32 v{AD+4*n+2}, v6, 3, v7
        v_lshl_add_u32 v{AD+4*n+3}, v6, 3, v41
        """)
    k(f"""
    s_lshl_b32 s35, s34, 2
    s_add_u32 s35, s35, s3
    s_mul_i32 s35, s35, 245760
    s_mul_i32 s36, s33, 15360
    s_add_u32 s35, s35, s36
    s_add_u32 s35, s35, {WS_WD}
    s_lshl_b32 s36, s32, 7
    s_add_u32 s36, s36, {FL_FD}
    s_waitcnt vmcnt(0)
    s_barrier
    """)
    O=48
    for n in range(3):
        for a in range(5):
            o=O+20*n+4*a; va=AD+4*n+(0 if a<4 else 2)
            off = 64*(a>>1)+8*(a&1) if a<4 else 128
            k(f"ds_read_b64_tr_b16 v[{o}:{o+1}], v{va} offset:{off}")
            k(f"ds_read_b64_tr_b16 v[{o+2}:{o+3}], v{va+1} offset:{off}")
        k("s_waitcnt lgkmcnt(0)")
        for a in range(5):
            i=5*n+a; o=O+4*i
            k(f"buffer_store_dwordx4 v[{o}:{o+3}], v3, {WS}, s35 offen offset:{1024*(i&3)} sc1")
            if (i&3)==3: k("s_add_u32 s35, s35, 4096")
    k("s_waitcnt vmcnt(0)\ns_barrier")
    post_flag(k,"s36",4,5)
    P.stamp(3)
    k("s_branch FZ_JOIN")
```

```python
from fzc import *
from fz1 import WAVE_LDS, CB, FEARLY, FPOST, fdma_
OOB="0x80000000"
E_=lambda n,d: int(os.environ.get(n,str(d)))
def wreg(n):
    if n<12: return ("v",208+4*n)
    if n<28: return ("v",112+4*(n-12))
    b=[224,64,192,32][(n-28)//8]
    return ("a",b+4*((n-28)&7))
def rr(p,n=4): return f"{p[0]}[{p[1]}:{p[1]+n-1}]"
def wload(n):
    ks,a=divmod(n,3)
    so=(27 if a==1 else 24)+(ks>>3)
    return f"buffer_load_dwordx4 {rr(wreg(n))}, {'v7' if a==2 else 'v6'}, {WS}, s{so} offen offset:{512*(ks&7)} sc1"
def g1_pre(k):
    k(f"""
    s_bfe_u32 s20, s2, 0x20001
    s_lshl_b32 s20, s20, 2
    s_bfe_u32 s21, s2, 0x20003
    s_add_u32 s20, s20, s21
    s_and_b32 s21, s2, 1
    s_lshl_b32 s21, s21, 3
    s_lshr_b32 s22, s2, 5
    s_add_u32 s21, s21, s22
    s_lshl_b32 s22, s21, 2
    s_add_u32 s22, s22, s3
    s_mul_i32 s24, s22, 30720
    s_add_u32 s24, s24, {WS_WP}
    s_add_u32 s25, s24, 4096
    s_add_u32 s26, s24, 8192
    s_add_u32 s27, s24, {MS}
    s_add_u32 s28, s25, {MS}
    s_add_u32 s29, s26, {MS}
    s_mov_b32 s30, {FL_F0+160*128}
    s_lshr_b32 s23, s2, 7
    s_lshl_b32 s31, s3, 3
    s_add_u32 s23, s23, s31
    s_lshl_b32 s23, s23, 7
    s_add_u32 s23, s23, {FL_FD}
    s_lshr_b32 s53, s2, 5
    s_mul_i32 s53, s53, 245760
    s_mul_i32 s31, s3, 61440
    s_add_u32 s53, s53, s31
    s_add_u32 s53, s53, {WS_WD}
    s_lshl_b32 s50, s3, 12
    s_mul_i32 s51, s20, 81920
    s_add_u32 s51, s51, s50
    s_add_u32 s51, s51, {WS_HB}
    v_lshrrev_b32 v8, 4, v0
    v_and_b32 v9, 7, v0
    v_lshl_add_u32 v8, v8, 3, v9
    v_lshlrev_b32 v8, 4, v8
    v_bfe_u32 v9, v0, 3, 1
    v_mul_u32_u24 v6, 10240, v9
    v_add_u32 v6, v6, v8
    v_mul_u32_u24 v7, {MS}, v9
    v_add_u32 v8, 20480, v8
    v_add_u32 v7, v7, v8
    """)

def wdreg(n):
    if n<32: return ("a",[160,0,96,128][n//8]+4*(n&7))
    if n<40: return ("v",176+4*(n-32))
    return wreg(n-28)
def wdload(vm,n,va):
    o=[("i",vm,f"buffer_load_dwordx4 {rr(wdreg(n))}, v{va}, {WS}, s53 offen offset:{1024*(n&3)} sc1",("Wd",n))]
    if (n&3)==3: o.append(("0","s_add_u32 s53, s53, 4096"))
    return o
def h0addr(a,b):
    return [f"v_min_u32 v{a}, 39, v0", f"s_lshl_b32 s30, s3, 10", f"v_and_b32 v{b}, 7, v{a}", f"v_lshrrev_b32 v{a}, 3, v{a}",
            f"s_add_u32 s30, s30, {FL_H0}", f"v_lshl_add_u32 v{a}, v{a}, 5, v{b}", f"s_add_u32 s31, s30, {FL_H1-FL_H0}", f"v_lshlrev_b32 v4, 7, v{a}"]
def faaddr(a,b):
    return [f"s_mul_i32 s31, s22, 3", f"v_and_b32 v{a}, 1, v0", f"v_lshl_add_u32 v{a}, v{a}, 1, s31", f"v_lshrrev_b32 v{a}, 3, v{a}",
            f"v_bfe_u32 v{b}, v0, 1, 1", f"v_mul_u32_u24 v{b}, 24, v{b}", f"v_add_lshl_u32 v{a}, v{a}, v{b}, 7"]
def fdaddr():
    return ["v_and_b32 v178, 3, v0","v_lshlrev_b32 v178, 8, v178"]
def g1_addr(a,b):
    return [f"v_lshrrev_b32 v{a}, 3, v0", f"v_bfe_u32 v{b}, v0, 1, 2", f"v_and_b32 v5, 3, v{a}", f"v_xor_b32 v{b}, v{b}, v5",
            f"v_lshlrev_b32 v5, 7, v{a}", f"v_lshl_add_u32 v5, v{b}, 5, v5", f"v_and_b32 v{b}, 1, v0", f"v_lshl_add_u32 v5, v{b}, 4, v5",
            "v_xor_b32 v6, 32, v5"]

def conv(k,P):
    ACC=16; RING=48; QR=176; T=192; FD=12
    GB=4*4160
    k(f"""
    v_cmp_eq_u32 vcc, 0, v0
    v_mov_b32 v11, {OOB}
    v_and_b32 v0, 63, v0
    v_cndmask_b32 v11, v11, 0, vcc
    v_and_b32 v6, 15, v0
    v_lshrrev_b32 v7, 4, v0
    v_mov_b32 v8, 0
    v_mov_b32 v9, 0
    v_lshlrev_b32 v10, 3, v0
    v_add_u32 v10, s46, v10
    ds_write_b64 v10, v[8:9] offset:{GB}
    s_mov_b64 exec, 15
    ds_write_b64 v10, v[8:9]
    s_mov_b64 exec, -1
    v_add_u32 v1, 1, v6
    v_and_b32 v1, 3, v1
    v_sub_u32 v2, v6, v1
    v_lshlrev_b32 v8, 3, v7
    v_sub_u32 v2, v2, v8
    v_add_u32 v2, 25, v2
    v_lshlrev_b32 v2, 1, v2
    v_mul_u32_u24 v1, 4160, v1
    v_add3_u32 v1, v1, v2, s46
    v_sub_u32 v16, v6, v8
    v_add_u32 v16, 25, v16
    v_lshlrev_b32 v16, 1, v16
    v_add_u32 v16, s46, v16
    v_lshlrev_b32 v2, 5, v6
    v_lshl_add_u32 v4, v7, 3, v2
    v_lshlrev_b32 v5, 1, v4
    v_lshl_add_u32 v2, v7, 4, v2
    s_add_u32 s36, s46, {GB+32}
    v_add_u32 v2, s36, v2
    s_and_b32 s37, s35, 1
    s_lshl_b32 s37, s37, 4
    s_lshr_b32 s47, s47, s37
    s_and_b32 s47, s47, 0xffff
    v_sub_u32 v8, v8, v6
    v_subrev_u32 v8, 9, v8
    v_and_b32 v9, 1, v8
    v_lshlrev_b32 v9, 4, v9
    v_lshlrev_b32 v9, v9, s47
    v_ashrrev_i32 v8, 1, v8
    v_mov_b32 v3, s60
    s_lshl_b32 s34, s2, 7
    s_add_u32 s33, s34, {FL_F0}
    s_waitcnt vmcnt({0 if FPOST else 4*(4-FEARLY)})
    s_barrier
    buffer_store_dword v3, v11, {WS}, s33 offen sc1
    """)
    P.stamp(3); P.stamp(1,6)
    if FPOST:
        for c in range(FEARLY,4): fdma_(k,c)
    P.stamp(2,6)
    for m in range(4):
        k(f"v_cmp_eq_u32 vcc, {m}, v8\ns_nop 1\nv_cndmask_b32 v{FD+m}, 0, v9, vcc")
    k(f"""
    v_and_b32 v8, 1, v7
    v_lshlrev_b32 v8, 2, v8
    v_lshrrev_b32 v9, 2, v6
    v_add_u32 v8, v8, v9
    v_mul_u32_u24 v10, 81920, v8
    v_and_b32 v8, 3, v6
    v_lshl_add_u32 v10, v8, 5, v10
    v_lshrrev_b32 v8, 1, v7
    v_lshl_add_u32 v10, v8, 4, v10
    s_lshl_b32 s40, s35, 7
    s_add_u32 s40, s40, {WS_HB}
    s_add_u32 s41, s40, {8*81920}
    s_add_u32 s42, s40, {16*81920}
    s_add_u32 s43, s40, {24*81920}
    s_and_b32 s32, s2, 0xf0
    v_cmp_gt_u32 vcc, 16, v0
    v_mov_b32 v17, s32
    v_mov_b32 v8, 192
    v_cndmask_b32 v17, v8, v17, vcc
    v_add_u32 v17, v17, v0
    v_lshlrev_b32 v17, 7, v17
    s_mov_b32 s32, {FL_F0}
    s_lshl_b32 s36, s35, 12
    s_add_u32 s37, s36, {WS_QT}
    s_lshl_b32 s44, s3, 12
    s_add_u32 s45, s44, {WS_A}
    s_add_u32 s48, s34, {FL_H0}
    s_add_u32 s49, s34, {FL_H1}
    v_lshlrev_b32 v3, 4, v0
    """)
    g1_pre(k)
    vm = Cnt(k,"vmcnt",63); lg = Cnt(k,"lgkmcnt",15)
    loc = {}
    for p in range(4):
        loc[("F",p)] = ("a", 32*p); loc[("G",p)] = ("a", 128+32*p)
    for p in range(4,8):
        loc[("G",p)] = ("v", RING); loc[("F",p)] = ("v", RING+32)
    loc[("F",7)] = ("a", 96)
    def reg(kind, blk, fr, lo=0, n=4):
        f,b = loc[(kind,blk)]
        return f"{f}[{b+4*fr+lo}:{b+4*fr+lo+n-1}]"
    def reads(kind, blk):
        o=[]
        if kind=="G":
            for fr in (range(7,-1,-1)):
                o.append(("i",lg,f"ds_read_b128 {reg('G',blk,fr)}, v2 offset:{64*(8*blk+fr)}", ("G",blk,fr)))
        else:
            for fr in range(8):
                u=8*blk+fr
                if u==0: o.append(("i",lg,f"ds_read_b128 {reg('F',0,0)}, v16", ("F",0,0)))
                else:
                    o.append(("i",lg,f"ds_read_b64 {reg('F',blk,fr,0,2)}, v1 offset:{64*u}", None))
                    o.append(("i",lg,f"ds_read_b64 {reg('F',blk,fr,2,2)}, v1 offset:{64*u+8}", ("F",blk,fr)))
        return o
    clk=Clk()
    S=Stream(k,clk); V=Stream(k,clk); L=Stream(k,clk)
    NEWC=E_("NEWC",0); FRD=E_("FRD",0)
    cd,ca=(172,171) if NEWC else (192,3)
    clr=[f"s_mul_i32 s54, s35, 10240", f"v_mov_b32 v{cd}, -1", f"s_add_u32 s54, s54, {WS_HH}", f"v_mov_b32 v{cd+1}, -1",f"v_mov_b32 v{cd+2}, -1",f"v_mov_b32 v{cd+3}, -1"]
    clr0=len(clr)
    for i in range(10):
        clr.append(("i",vm,f"buffer_store_dwordx4 v[{cd}:{cd+3}], v{ca}, {WS}, s54 offen offset:{1024*(i&3)} sc1","CLR"))
        if (i&3)==3: clr.append(("0","s_add_u32 s54, s54, 4096"))
    CLRP=E_("CLRP",0)
    wl=lambda a,b: [("i",vm,wload(n),("W",n)) for n in range(a,b)]
    def frd():
        for p in range(5): S.add(reads("F",p))
        S.flush()
    if NEWC:
        S.add(faaddr(170,171)+clr[:clr0]+["v_mov_b32 v171, v3","s_mov_b32 s55, s30"]); S.flush()
        P.stamp(3,6)
        if FRD==0:
            k("s_waitcnt vmcnt(0) lgkmcnt(0)"); P.stamp(4,6); frd(); P.stamp(5,6)
        poll(k,17,"s32",18); vm.drained()
    else:
        S.add(faaddr(18,19)); S.flush()
        if CLRP==0:
            S.add(clr); S.flush(); P.stamp(3,6); k(f"s_waitcnt vmcnt({11-FPOST}) lgkmcnt(0)")
        else: k(f"s_waitcnt vmcnt({1-FPOST}) lgkmcnt(0)")
        P.stamp(4,6)
        frd(); P.stamp(5,6)
        poll(k,18,"s30",19)
        P.stamp(7,5); P.stamp(6,6)
        S.add(wl(0,28)); S.flush(); P.stamp(7,6)
        if CLRP==1: S.add(clr); S.flush()
        poll(k,17,"s32",18); vm.drained()
    P.stamp(4); P.stamp(8,6)
    def gd(i): k(f"buffer_load_dwordx4 v3, {WS}, s36 offen offset:{1024*i} sc1 lds"); vm.issue(f"P{i}")
    def ql(t): return ("i",vm,f"buffer_load_dwordx2 v[{QR+2*t}:{QR+2*t+1}], v4, {WS}, s37 offen offset:{512*t} sc1",f"Q{t}")
    k(f"s_add_u32 m0, s46, {GB+512}\ns_nop 0"); gd(0); gd(1)
    k("s_mov_b32 m0, s44\ns_nop 0")
    for i in range(4): k(f"buffer_load_dwordx4 v3, {WS}, s45 offen offset:{1024*i} sc1 lds"); vm.issue("AB")
    S.add([ql(t) for t in range(2)]); S.flush()
    k(f"s_add_u32 m0, s46, {GB+512}\ns_nop 0"); gd(2); gd(3)
    S.add([ql(t) for t in range(2,8)]); S.flush()
    if NEWC and FRD==1:
        k("s_waitcnt lgkmcnt(0)"); frd()
    k("v_mov_b32 v3, s60\ns_waitcnt lgkmcnt(0)"); lg.drained()
    def rdab(t):
        A=T+8*(t&1)
        return [("i",lg,f"ds_read_b128 v[{A}:{A+3}], v5 offset:{1024*t}",None),("i",lg,f"ds_read_b128 v[{A+4}:{A+7}], v5 offset:{8192+1024*t}",("ab",t))]
    def epi(t):
        q=QR+2*t; A=T+8*(t&1); B=A+4; Y=ACC+4*t; C=T+4+2*(t&1)
        o=[("w",vm,f"Q{t}"),("w",lg,("ab",t))]
        for h in range(2):
            o+=[f"v_lshlrev_b32 v8, 16, v{q+h}", f"v_and_b32 v9, s38, v{q+h}",
                f"v_pk_fma_f32 v[{A+2*h}:{A+2*h+1}], v[8:9], v[{A+2*h}:{A+2*h+1}], v[{B+2*h}:{B+2*h+1}]",
                f"v_pk_fma_f32 v[{A+2*h}:{A+2*h+1}], v[{A+2*h}:{A+2*h+1}], v[{Y+2*h}:{Y+2*h+1}], v[8:9]"]
        o+=[f"v_cvt_pk_bf16_f32 v{C}, v{A}, v{A+1}", f"v_cvt_pk_bf16_f32 v{C+1}, v{A+2}, v{A+3}"]
        return o
    def pst(t,sp):
        C=T+4
        return sp+[f"v_permlane16_swap_b32 v{C}, v{C+2}", f"v_permlane16_swap_b32 v{C+1}, v{C+3}",
                ("i",vm,f"buffer_store_dwordx4 v[{C}:{C+3}], v10, {WS}, s{40+t//2} offen sc1",f"H{t}")]
    blocks = [(0,0),(0,1),(1,0),(0,2),(1,1),(2,0),(0,3),(1,2),(2,1),(3,0),
              (1,3),(2,2),(3,1),(2,3),(3,2),(3,3),
              (3,4),(2,4),(1,4),(0,4),(4,3),(4,2),(4,1),(4,0),
              (2,5),(1,5),(0,5),(5,2),(5,1),(5,0),(1,6),(0,6),(6,1),(6,0),(0,7),(7,0)]
    TB=[0]
    for (p,q) in blocks: TB.append(TB[-1]+8+(p==0))
    at=lambda b,d=0: ("t",TB[b]+d)
    L.add(reads("G",1)+[("w",vm,"P1")]+reads("G",2)+reads("G",3)+[at(8),("w",vm,"P2")]+reads("G",4)
          +[at(17)]+reads("F",7)+[at(20)]+reads("G",5)+[at(24)]+reads("F",5)+[at(27),("w",vm,"P3")]+reads("G",6)+[at(30)]+reads("F",6)+[at(32)]+reads("G",7))
    done=set()
    def need(x):
        assert x in done, (x, clk.t, TB[14], len(S.q), S.q[:3])
    if NEWC:
        prb=lambda a,d,t: ("i",vm,f"buffer_load_dword v{d}, v{a}, {WS}, s55 offen sc1",t)
        W1=E_("W1",24)
        V.add([prb(170,169,"A1")]+clr[clr0:]+[at(E_("A1B",0)),("w",vm,"A1"),"v_cmp_ne_u32 vcc, s60, v169","s_cmp_lg_u64 vcc, 0",f"s_cselect_b32 s62, {OOB}, 0",
              "v_xor_b32 v6, s62, v6","v_xor_b32 v7, s62, v7"]+wl(0,W1)+[at(14),("z",lambda: need("e3")),"v_mov_b32 v182, v170",at(E_("A2B",14)),prb(182,183,"A2")]+wl(W1,28)
              +[at(21),("w",vm,"A2"),"v_cmp_ne_u32 vcc, s60, v183","s_cmp_lg_u64 vcc, 0",f"s_cselect_b32 s63, {OOB}, 0","s_xor_b32 s52, s62, s63",
              "v_xor_b32 v6, s52, v6","v_xor_b32 v7, s52, v7"])
    V.add([at(21)]+wl(28,36)+[at(25)]+wl(36,44)+[at(28)]+wl(44,52)+[at(31)]+wl(52,60))
    S.add([at(3),("w",vm,"AB"),"s_barrier"] + rdab(0)+rdab(1)+[None]*6+epi(0)+epi(1)+pst(0,[None,None]))
    S.add(rdab(2)+rdab(3)+[at(8)]+epi(2)+[at(10,3)]+epi(3)+[("z",lambda: done.add("e3"))]+pst(2,[None,None]))
    S.add(h0addr(8,9)+fdaddr()+rdab(4)+[("i",vm,f"buffer_load_dword v177, v178, {WS}, s23 offen sc1","FDp")])
    S.add([at(E_("H0B",19)),("w",vm,"H2"),"s_barrier",("i",vm,f"buffer_store_dword v3, v11, {WS}, s48 offen sc1",None)])
    S.add([at(24,3)]+epi(4)+rdab(5)+[at(30,3)]+epi(5)+pst(4,[None,None])+rdab(6)+rdab(7)+g1_addr(180,181)[:-1])
    S.add([at(E_("H0P",33)),("i",vm,f"buffer_load_dword v176, v4, {WS}, s30 offen sc1","H0p"),at(34,3)]+epi(6))
    P.stamp(9,6)
    vm.wait("P0")
    P.stamp(5); P.stamp(10,6)
    if E_("CRS",1): clk.tl=0.0; clk.tv=0.0
    S2=Stream(k,clk); S2.add(reads("G",0)); S2.flush()
    seen=set()
    CST=[int(x) for x in os.environ.get("CST","0,2,4,7,10,13,16,20,24,28,32,35").split(",")]
    for bi,(p,q) in enumerate(blocks):
        if bi in CST: P.stamp(1+CST.index(bi),2)
        assert clk.t==TB[bi]
        Y=ACC+4*(p+q)
        for r in range(8):
            for tag in (("F",p,r),("G",q,7-r)):
                L.until(lg,tag); lg.wait(tag)
            c = f"v[{Y}:{Y+3}]" if (p+q) in seen else "0"
            seen.add(p+q)
            k(f"v_mfma_f32_16x16x32_bf16 v[{Y}:{Y+3}], {reg('F',p,r)}, {reg('G',q,7-r)}, {c}")
            tick(clk,[V,L,S],first=S)
            if r==0 and p==0:
                k(f"v_mfma_f32_16x16x32_bf16 v[{Y}:{Y+3}], v[{FD}:{FD+3}], {reg('G',q,7)}, v[{Y}:{Y+3}]")
                tick(clk,[V,L,S],first=S)
    assert not L.q
    print("conv end: left S",len(S.q),"V",len(V.q))
    S.flush()
    k("s_nop 7")
    S.add(epi(7)+pst(6,["s_nop 1"])); S.flush()
    nleft=sum(1 for x in V.q if x[0]=='i'); V.flush()
    if NEWC:
        k(f"""s_or_b32 s52, s62, s63
        s_cbranch_scc0 FZ_WOK
        v_xor_b32 v6, s63, v6
        v_xor_b32 v7, s63, v7
        s_cmp_eq_u32 s63, 0
        s_cbranch_scc1 FZ_W28""")
        poll(k,182,"s55",183)
        for n in range(28,60): k(wload(n))
        k("FZ_W28:")
        for n in range(28): k(wload(n))
        k("FZ_WOK:")
    k(g1_addr(180,181)[-1])
    P.stamp(6)
    if STOP<=2:
        vm.wait("H6")
        k(f"s_barrier\nbuffer_store_dword v3, v11, {WS}, s49 offen sc1\ns_branch FZ_FIN")
        return
    global NLEFT
    NLEFT=nleft
    k("s_barrier")
    vm.wait("FDp"); check_or_poll(k,178,"s23",177)
    vm.wait("H0p"); check_or_poll(k,4,"s30",176)
    k("s_branch FZ_G1")

def join(k,P):
    if STOP<=2: return
    g1_pre(k)
    S=Stream(k)
    S.add(faaddr(4,5)); S.flush()
    poll(k,4,"s30",5)
    for n in range(60): k(wload(n))
    S.add(fdaddr()); S.flush()
    poll(k,178,"s23",177)
    S.add(h0addr(8,9)+g1_addr(8,9)+[f"v_mov_b32 v11, {OOB}","s_mov_b32 s49, 0"]); S.flush()
    poll(k,4,"s30",176,sleep=E_("JSL",2))
    k("FZ_G1:")
    import fz3
    fz3.g1(k,P,NLEFT)
```

```python
from fzc import *
from fz2 import wreg, rr, wdreg, wdload, OOB, E_
MF="v_mfma_f32_16x16x32_bf16"
SA=96; SB=100; SX=104; ONES=108; RING=16
BLK=49152

def g1(k,P,nleft):
    clk=Clk()
    vm=Cnt(k,"vmcnt",63); lg=Cnt(k,"lgkmcnt",15); S=Stream(k,clk); V=Stream(k,clk); D=Stream(k,clk); L=Stream(k,clk)
    vm.issue("H6")
    for n in range(nleft): vm.issue()
    def dma(slab):
        o=[]
        for j in range(5):
            o+=["s_mov_b32 m0, s50",("0","s_add_u32 s50, s50, 16384")]
            for i in range(4):
                o.append(("i",vm,f"buffer_load_dwordx4 v{5+(i&1)}, {WS}, s51 offen offset:{1024*i} sc1 lds",("S",slab,j)))
            o.append(("0",f"s_add_u32 s51, s51, {16384 if j<4 else 16384+15*81920}"))
        return o
    P.stamp(7)
    S.add(dma(0)); S.flush()
    k(f"""
    s_load_dwordx2 s[44:45], s[0:1], 80
    v_mov_b32 v13, v4
    v_mov_b32 v12, s60
    v_lshrrev_b32 v16, 4, v0
    v_bfe_u32 v17, v0, 2, 2
    v_and_b32 v18, 3, v0
    v_and_b32 v19, 15, v0
    v_lshl_add_u32 v1, v16, 3, v17
    v_lshlrev_b32 v1, 7, v1
    v_and_b32 v20, 1, v16
    v_xor_b32 v20, v20, v17
    v_lshl_add_u32 v1, v20, 5, v1
    v_lshl_add_u32 v1, v18, 3, v1
    v_xor_b32 v2, 32, v1
    v_xor_b32 v3, 64, v1
    v_xor_b32 v4, 0x60, v1
    s_and_b32 s32, s21, 3
    s_lshl_b32 s33, s32, 5
    v_xor_b32 v7, s33, v1
    s_lshl_b32 s33, s3, 12
    v_add_u32 v7, s33, v7
    v_lshlrev_b32 v14, 4, v0
    v_cmp_gt_u32 vcc, 48, v0
    v_mov_b32 v21, {OOB}
    s_lshr_b32 s33, s21, 2
    v_cmp_eq_u32 s[34:35], v16, v17
    v_cndmask_b32 v8, v21, v14, vcc
    v_cmp_eq_u32 vcc, s33, v17
    v_xor_b32 v20, s33, v16
    v_cmp_gt_u32 s[36:37], 2, v20
    s_lshl_b32 s32, s32, 9
    s_lshl_b32 s33, s3, 3
    s_add_u32 s32, s32, s33
    v_lshlrev_b32 v15, 5, v19
    v_add_u32 v15, s32, v15
    v_add_u32 v20, 4, v15
    s_and_b64 s[36:37], s[36:37], vcc
    v_cndmask_b32 v15, v15, v20, s[34:35]
    v_cndmask_b32 v15, v21, v15, s[36:37]
    v_cmp_eq_u32 s[36:37], 1, v18
    v_cmp_eq_u32 s[40:41], 2, v18
    v_cmp_eq_u32 s[42:43], 3, v18
    v_mov_b32 v{ONES}, 0x3f803f80
    v_mov_b32 v{ONES+1}, 0x3f803f80
    v_mov_b32 v{ONES+2}, 0x3f803f80
    v_mov_b32 v{ONES+3}, 0x3f803f80
    s_mov_b32 s38, 0xffff0000
    s_mul_i32 s52, s22, 768
    s_mul_i32 s32, s20, {4*BLK}
    s_add_u32 s52, s52, s32
    s_add_u32 s52, s52, {WS_HH}
    s_lshl_b32 s62, s20, 11
    s_add_u32 s62, s62, {WS_RS}
    s_and_b32 s32, s2, 7
    s_lshl_b32 s32, s32, 1
    s_bfe_u32 s33, s2, 0x10004
    s_add_u32 s32, s32, s33
    s_bfe_u32 s33, s2, 0x10003
    s_lshr_b32 s48, s2, 5
    s_lshl_b32 s54, s32, 2
    s_add_u32 s54, s54, s33
    s_mul_i32 s4, s54, {BLK}
    s_mul_i32 s5, s3, 12288
    s_add_u32 s4, s4, s5
    s_add_u32 s4, s4, {WS_HH}
    """)
    bo=[0,2,64,66]
    for s in range(4):
        for i in range(3):
            if s or i: k(f"s_add_u32 s{4+3*s+i}, s4, {bo[s]*BLK+4096*i}")
    k(f"""
    s_mul_i32 s16, s54, 20480
    s_mul_i32 s17, s48, 160
    s_add_u32 s16, s16, s17
    s_lshl_b32 s24, s54, 9
    s_add_u32 s24, s24, {WS_RS}
    """)
    for s in range(1,4): k(f"s_add_u32 s{16+s}, s16, {bo[s]*20480}\ns_add_u32 s{24+s}, s24, {bo[s]*512}")
    k(f"""
    s_lshr_b32 s28, s3, 1
    s_lshl_b32 s28, s28, 4
    s_add_u32 s28, s28, s32
    s_mul_i32 s28, s28, 81920
    s_mul_i32 s29, s48, 10240
    s_add_u32 s28, s28, s29
    s_and_b32 s29, s3, 1
    s_mul_i32 s29, s29, 5120
    s_add_u32 s28, s28, s29
    s_add_u32 s28, s28, {WS_HB}
    s_mul_i32 s29, s3, 5120
    v_add_u32 v10, s29, v14
    s_mov_b32 s63, s29
    s_add_u32 s23, s53, 46080
    s_add_u32 s29, s29, 40960
    s_lshl_b32 s39, s3, 8
    v_lshlrev_b32 v9, 4, v19
    v_lshl_add_u32 v9, v16, 11, v9
    v_add_u32 v9, s39, v9
    s_lshl_b32 s39, s3, 3
    v_lshl_add_u32 v20, v16, 5, s39
    s_lshl_b32 s39, s3, 2
    s_add_u32 s39, s39, 64
    v_mov_b32 v22, s39
    v_cmp_gt_u32 vcc, 32, v0
    s_lshl_b32 s39, s33, 5
    s_add_u32 s39, s39, 40960
    v_cndmask_b32 v20, v22, v20, vcc
    v_add_u32 v20, v20, v17
    v_lshlrev_b32 v20, 7, v20
    v_lshl_add_u32 v20, v18, 3, v20
    s_mov_b32 s46, {NB_ACT}
    s_mov_b32 s47, 0x00020000
    s_waitcnt lgkmcnt(0)
    """)
    vm.wait("H6")
    k(f"s_barrier\nbuffer_store_dword v12, v11, {WS}, s49 offen sc1"); vm.issue()
    k("v_add_u32 v11, s39, v20")
    def xread(g):
        q,r=divmod(g,40); ks=r>>1; b=2*(q&1)+(g&1); slab=q>>1
        if r%8==0 and (q&1)==0:
            D.until(vm,("S",slab,r//8,"e")) if slab else None
            vm.wait(("S",slab,r//8)); k("s_barrier")
        if ks==(12 if slab else 16): k(f"v_add_u32 v{1+b}, 0x10000, v{1+b}")
        off = ks*4096 - (65536 if ks>=16 else 0) if slab==0 else 16384+ks*4096-(65536 if ks>=12 else 0)
        d=RING+4*(g%8)
        k(f"ds_read_b64_tr_b16 v[{d}:{d+1}], v{1+b} offset:{off}"); lg.issue()
        k(f"ds_read_b64_tr_b16 v[{d+2}:{d+3}], v{1+b} offset:{off+512}"); lg.issue(("X",g))
        clk.use("ds_read_b128")
        if r%8==0 and (q&1)==0:
            t=5*slab+r//8
            S.add([("i",lg,f"ds_read_b64_tr_b16 v[{SX}:{SX+1}], v7",None),("i",lg,f"ds_read_b64_tr_b16 v[{SX+2}:{SX+3}], v7 offset:512",("SX",t)),
                   "v_add_u32 v7, 0x4000, v7"])
    def smf(t):
        c=lambda r: "0" if t%5==0 else f"v[{r}:{r+3}]"
        return [("w",lg,("SX",t)), f"{MF} v[{SA}:{SA+3}], v[{ONES}:{ONES+3}], v[{SX}:{SX+3}], {c(SA)}",
                f"{MF} v[{SB}:{SB+3}], v[{SX}:{SX+3}], v[{SX}:{SX+3}], {c(SB)}"]
    def sfin(slab):
        return [f"v_cndmask_b32 v{SB}, v{SB}, v{SB+1}, s[36:37]", f"v_cndmask_b32 v{SB}, v{SB}, v{SB+2}, s[40:41]",
                f"v_cndmask_b32 v{SB}, v{SB}, v{SB+3}, s[42:43]", f"v_cndmask_b32 v{SB}, v{SA}, v{SB}, s[34:35]",
                ("i",vm,f"buffer_store_dword v{SB}, v15, {WS}, s62 offen sc1",None), ("0","s_add_u32 s62, s62, 32768")]
    def epi(q,nop=False):
        def one(c):
            return [f"v_pk_mul_f32 v[{c}:{c+1}], v[{c}:{c+1}], v[{c+4}:{c+5}]", f"v_pk_mul_f32 v[{c+2}:{c+3}], v[{c+2}:{c+3}], v[{c+6}:{c+7}]",
                f"v_permlane32_swap_b32 v{c+8}, v{c+10}", f"v_permlane32_swap_b32 v{c+9}, v{c+11}",
                f"v_cvt_pk_bf16_f32 v{c+4}, v{c}, v{c+1}", f"v_cvt_pk_bf16_f32 v{c+5}, v{c+2}, v{c+3}",
                f"v_pk_mul_f32 v[{c+8}:{c+9}], v[{c+8}:{c+9}], v[{c+10}:{c+11}]",
                f"v_cvt_pk_bf16_f32 v{c+6}, v{c+8}, v{c+9}",
                f"v_permlane16_swap_b32 v{c+4}, v{c+5}", f"v_permlane16_swap_b32 v{c+6}, v{c+7}",
                f"v_permlane32_swap_b32 v{c+4}, v{c+6}", f"v_permlane32_swap_b32 v{c+5}, v{c+7}"]
        c=72 if q&1 else 48
        o=[]
        for i,(x,y) in enumerate(zip(one(c),one(c+12))):
            if nop and i==10: o.append("s_nop 0")
            o+=[x,y]
        for h in range(2):
            d=c+12*h+4
            o+=[("i",vm,f"buffer_store_dwordx4 v[{d}:{d+3}], v8, {WS}, s52 offen sc1",("HS",q,h)), ("0",f"s_add_u32 s52, s52, {BLK*(61 if (q==1 and h==1) else 1)}")]
        return o
    bufn=[0,32,44,0]
    def hhl(s,j): return f"buffer_load_dwordx4 {rr(wreg(bufn[s]+j))}, v14, {WS}, s{4+3*s+(j>>2)} offen offset:{1024*(j&3)} sc1"
    def hhload(s,a=0,b=12): return [("i",vm,hhl(s,j),("HH",s,j)) for j in range(a,b)]
    RSR=[68,70,92,94]
    def rsl(s): return f"buffer_load_dwordx2 v[{RSR[s]}:{RSR[s]+1}], v13, {WS}, s{24+s} offen sc1"
    def rsload(s): return [("i",vm,rsl(s),("RS",s))]
    wd=lambda a,b: sum([wdload(vm,n,14) for n in range(a,b)],[])
    plan={i:[] for i in range(161)}
    for t in range(10):
        gb=80*(t//5)+8*(t%5)-5
        plan[max(gb,-2)+3]+=smf(t)
    plan[E_("H1P",16)]+=[("i",vm,f"buffer_load_dword v12, v13, {WS}, s31 offen sc1","H1p")]
    def h1chk():
        vm.wait("H1p"); check_or_poll(k,13,"s31",12); P.stamp(9)
    late=[ "v_and_b32 v12, 15, v0","v_lshrrev_b32 v13, 4, v0", "v_mul_u32_u24 v6, 1280, v12", "s_lshl_b32 s39, s3, 4",
           "v_lshl_add_u32 v5, v13, 6, v6", "v_add_u32 v5, s39, v5", "s_lshl_b32 s39, s3, 3", "s_add_u32 s39, s39, 128", "v_add_u32 v6, s39, v6",
           "v_cmp_gt_u32 vcc, 2, v13", "v_cmp_eq_u32 s[54:55], 2, v13", "v_lshlrev_b32 v13, 3, v13", "v_lshl_add_u32 v13, v12, 5, v13",
           f"v_mov_b32 v12, {OOB}", "v_cndmask_b32 v5, v12, v5, vcc", "v_cndmask_b32 v6, v12, v6, s[54:55]"]
    H1C=E_("H1C",42)
    at=lambda g: ("t",3*g)
    d1=dma(1)
    dd=[]
    for x in d1:
        dd.append(x)
        if isinstance(x,tuple) and x[0]=="0" and "s51" in x[1]:
            jj=sum(1 for y in dd if isinstance(y,tuple) and y[0]=="i")//4-1
            dd.append(("x0",jj))
    def mark(jj): return ("z",lambda: vm.tags.__setitem__(("S",1,jj,"e"),vm.n))
    D.add([at(H1C),("x",h1chk)]+[mark(x[1]) if isinstance(x,tuple) and x[0]=="x0" else x for x in dd]+late)
    plan[41]+=sfin(0)+epi(0)
    plan[81]+=epi(1)
    res=["s_mov_b32 m0, s29",("0","s_add_u32 s29, s29, 4096")]+[("i",vm,f"buffer_load_dwordx4 v14, {WS}, s28 offen offset:{1024*i} sc1 lds",None) for i in range(4)]
    res+=["s_mov_b32 m0, s29",("0","s_add_u32 s28, s28, 4096"),("i",vm,f"buffer_load_dwordx4 v14, {WS}, s28 offen sc1 lds","RES")]
    stg=[]
    for g in range(3):
        stg+=["s_mov_b32 m0, s63",("0","s_add_u32 s63, s63, 4096")]+[("i",vm,f"buffer_load_dwordx4 v14, {WS}, s23 offen offset:{1024*i} sc1 lds",None) for i in range(4)]
        stg+=["s_mov_b32 m0, s63",("0","s_add_u32 s23, s23, 4096"),("i",vm,f"buffer_load_dwordx4 v14, {WS}, s23 offen sc1 lds",("ST",g)),
              ("0","s_add_u32 s23, s23, 1024"),("0",f"s_add_u32 s63, s63, {[16384,36864,0][g]}")]
    WDE=E_("WDE",8)
    V.add(wd(0,WDE)); V.flush(); clk.tv=E_("TV0",0)
    V.add([at(E_("WDA",0))]+wd(WDE,40))
    V2=[at(84)]+stg+res
    def gate(n): return at(122+2*(n//3))
    for j in range(12): V2+=[gate(j)]+hhload(0,j,j+1)
    for n in range(40,45): V2+=[gate(n-28)]+wdload(vm,n,14)
    for j in range(12): V2+=[gate(32+j)]+hhload(1,j,j+1)
    plan[114]+=sfin(1)
    plan[121]+=epi(2)+rsload(0)+rsload(1)
    for g in range(5): xread(g)
    P.stamp(8)
    GST=[int(x) for x in os.environ.get("GST","0,8,24,40,56,72,88,104,120,132,144,159").split(",")]
    for gi in range(160):
        if gi in GST: P.stamp(1+GST.index(gi),3)
        S.add(plan[gi])
        if os.environ.get('DBG') and gi%8==0: print(gi,clk.t,clk.tv,clk.tl,len(S.q),len(V.q),len(D.q))
        if gi==84:
            D.flush(); V.add(V2)
        q,r=divmod(gi,40); ks=r>>1
        acc=(72 if q&1 else 48)+12*(gi&1); d=RING+4*(gi%8)
        if gi in (80,120): assert not any(isinstance(x,tuple) and x[0]=="i" and isinstance(x[3],tuple) and x[3][0]=="HS" and x[3][1]==q-2 for x in S.q)
        lg.wait(("X",gi))
        for a in range(3):
            c=acc+4*a
            k(f"{MF} v[{c}:{c+3}], {rr(wreg(3*ks+a))}, v[{d}:{d+3}], {'0' if ks==0 else f'v[{c}:{c+3}]'}")
            if a==0 and gi+5<160:
                clk.t+=1; xread(gi+5)
            else: tick(clk,[D,V,S],first=S)
    print("G1 end: left S",len(S.q),"V",len(V.q),"D",len(D.q))
    S.flush()
    P.stamp(10)
    k("s_nop 7")
    S.add(epi(3,True)); S.flush()
    if STOP<=3:
        k("s_branch FZ_FIN"); return
    AC=[48,72]
    slow=[]
    def mm(s,j,a):
        c=AC[s&1]+4*a
        return f"{MF} v[{c}:{c+3}], {rr(wdreg(5*j+a))}, {rr(wreg(bufn[s]+j))}, {'0' if j==0 else f'v[{c}:{c+3}]'}"
    def chk(s):
        def f():
            c=AC[s&1]
            k(f"v_cmp_u_f32 vcc, v{c}, v{c}\ns_cbranch_vccnz FZ_SL{s}\nFZ_SB{s}:")
            o=[f"FZ_SL{s}:"]+[hhl(s,j) for j in range(12)]+["s_waitcnt vmcnt(0)"]+[mm(s,j,0) for j in range(12)]
            o+=["s_nop 7","s_nop 1",f"v_cmp_u_f32 vcc, v{c}, v{c}",f"s_cbranch_vccz FZ_SO{s}","s_sub_u32 s61, s61, 1",f"s_cbranch_scc0 FZ_SL{s}","s_mov_b32 s61, 0",f"FZ_SO{s}:"]
            o+=[mm(s,j,a) for j in range(12) for a in range(1,5)]+["s_nop 7","s_nop 1",f"s_branch FZ_SB{s}"]
            slow.extend(o)
        return ("x",f)
    def rsred(s):
        a=RSR[s]; b=a+1
        def f():
            V.until(vm,("RS",s)); vm.wait(("RS",s))
            k(f"v_cmp_u_f32 vcc, v{a}, v{b}\ns_cbranch_vccnz FZ_RL{s}\nFZ_RB{s}:")
            slow.extend([f"FZ_RL{s}:",rsl(s),"s_waitcnt vmcnt(0)",f"v_cmp_u_f32 vcc, v{a}, v{b}",f"s_cbranch_vccz FZ_RB{s}","s_sub_u32 s61, s61, 1",
                         f"s_cbranch_scc0 FZ_RL{s}","s_mov_b32 s61, 0",f"s_branch FZ_RB{s}"])
        K=hex(f2u(1.0/640))
        return [("x",f), f"v_permlane16_swap_b32 v{a}, v{b}", f"v_add_f32 v{a}, v{a}, v{b}", f"v_mov_b32 v{b}, v{a}", "s_nop 1",
                f"v_permlane32_swap_b32 v{a}, v{b}", f"v_add_f32 v{a}, v{a}, v{b}", f"v_mov_b32 v{b}, v{a}", "s_nop 1",
                f"v_permlane16_swap_b32 v{a}, v{b}", f"v_mul_f32 v{a}, {K}, v{a}", f"v_mul_f32 v{b}, {K}, v{b}",
                f"v_fma_f32 v{b}, -v{a}, v{a}, v{b}", f"v_max_f32 v{b}, 0, v{b}", f"v_add_f32 v{b}, {hex(f2u(1e-5))}, v{b}",
                f"v_rcp_f32 v{a}, v{b}", "s_nop 0", f"v_mov_b32 v{b}, v{a}"]
    def fin(s,g1,g2,fill=None):
        fill=list(fill or [])
        def gapf(n):
            o=[]
            for _ in range(n): o.append(fill.pop(0) if fill else None)
            return o
        c=AC[s&1]; po=(s&1)*20480; sc=RSR[s]
        o=[chk(s)]+[("i",lg,f"ds_write_b128 v10, v[{c+4*a}:{c+4*a+3}] offset:{po+1024*a}",("pw",s)) for a in range(5)]
        ro=10240*(s>>1)+64*(s&1)
        if s==0: o+=[("w",vm,"RES")]
        o+=gapf(g1)+[("w",lg,("pw",s)),"s_barrier"]
        o+=[("i",lg,f"ds_read_b64_tr_b16 v[96:97], v11 offset:{ro}",None),("i",lg,f"ds_read_b64_tr_b16 v[98:99], v11 offset:{ro+512}",("rr",s))]
        for kq in range(4):
            for h in range(2):
                d=16+8*kq+4*h
                o.append(("i",lg,f"ds_read_b128 v[{d}:{d+3}], v9 offset:{po+5120*kq+1024*h}",("pr",s,kq)))
        o+=gapf(g2)+[("w",lg,("rr",s))]
        for i in range(4): o+=[f"v_lshlrev_b32 v{100+2*i}, 16, v{96+i}", f"v_and_b32 v{101+2*i}, s38, v{96+i}"]
        pa=lambda d,x: f"v_pk_add_f32 v[{d}:{d+1}], v[{d}:{d+1}], v[{x}:{x+1}]"
        o+=[("w",lg,("pr",s,1))]+[pa(16+2*i,24+2*i) for i in range(4)]
        o+=[("w",lg,("pr",s,3))]+[pa(32+2*i,40+2*i) for i in range(4)]+[pa(16+2*i,32+2*i) for i in range(4)]
        o+=[f"v_pk_fma_f32 v[{16+2*i}:{17+2*i}], v[{16+2*i}:{17+2*i}], v[{sc}:{sc+1}], v[{100+2*i}:{101+2*i}]" for i in range(4)]
        o+=[f"v_cvt_pk_bf16_f32 v{96+i}, v{16+2*i}, v{17+2*i}" for i in range(4)]
        OM=os.environ.get("OM","")
        o+=[("i",vm,f"buffer_store_dwordx4 v[96:99], v5, s[44:47], s{16+s} offen {OM}",None),("i",vm,f"buffer_store_dwordx2 v[96:97], v6, s[44:47], s{16+s} offen {OM}",None)]
        return o+fill
    p2={i:[] for i in range(240)}
    T0=clk.t
    k('v_add_u32 v7, 61440, v10')
    p2[2]+=rsred(0)
    for g in range(3):
        L.add([("w",vm,("ST",g))]+[("i",lg,f"ds_read_b128 {rr(wdreg(45+5*g+i))}, v{7 if g==2 else 10} offset:{[0,20480,0][g]+1024*i}",("WL",45+5*g+i)) for i in range(5)])
    V.add([("t",T0+E_("S2L",0))]+rsload(2)+rsload(3)+hhload(2)+[("t",T0+E_("S3L",60))])
    for j in range(12): V.add([("t",T0+5*j+5)]+hhload(3,j,j+1))
    for s in range(1,4):
        p2[60*s+3]+=fin(s-1,E_('G2A',6),E_('G2B',6),rsred(s))
    for s in range(4):
        for j in range(12):
            for a in range(5):
                i=60*s+5*j+a
                if i%20==0: P.stamp(1+i//20,4)
                S.add(p2[i])
                if a==0: V.until(vm,("HH",s,j)); vm.wait(("HH",s,j))
                if s==0:
                    if i<45: V.until(vm,("Wd",i)); vm.wait(("Wd",i))
                    else: L.until(lg,("WL",i)); lg.wait(("WL",i))
                k(mm(s,j,a))
                tick(clk,[V,L,S],first=S)
        if s==0: P.stamp(11)
    print("G2 end: left S",len(S.q),"V",len(V.q))
    S.flush()
    P.stamp(12)
    k("s_nop 3")
    S.add(fin(3,0,0)); S.flush()
    k(f"s_cmp_eq_u32 s2, 255\ns_cbranch_scc0 FZ_FIN\ns_mov_b32 s32, {WS_FL}")
    post_flag(k,"s32",4,3)
    k("s_branch FZ_FIN")
    k("\n".join(slow))
```

```python
from asmgen import *
import struct, os
def f2u(f): return struct.unpack("<I", struct.pack("<f", f))[0]
WS_KVT=0; WS_QT=0x280000; WS_A=0x500000; WS_B=0x502000; WS_HB=0x600000
WS_WP=0x900000; WS_WD=0xD00000; WS_HH=0x1000000; WS_RS=0x1600000; WS_FL=0x1780000; WS_SZ=0x1800000
FL_F0=WS_FL+0x1000; FL_FD=WS_FL+0xC000; FL_CL=WS_FL+0xD000; FL_H0=WS_FL+0x10000; FL_H1=WS_FL+0x18000
MS=192*10240
NB_ACT=2048*1280
WS="s[56:59]"
STOP=int(os.environ.get("STOP","99"))

class Cnt:
    def __init__(self, k, name, maxv):
        self.k, self.name, self.maxv = k, name, maxv
        self.n = 0; self.tags = {}; self.done = 0
    def issue(self, tag=None):
        self.n += 1
        if tag is not None: self.tags[tag] = self.n
    def need(self, tag):
        pos = self.tags[tag]
        if pos <= self.done: return None
        c = min(self.n - pos, self.maxv)
        self.done = self.n - c
        return f"s_waitcnt {self.name}({c})"
    def wait(self, tag):
        s = self.need(tag)
        if s: self.k(s)
    def drained(self): self.done = self.n

def dpp_allreduce16(k, v):
    for r in (8,4,2,1):
        k(f"s_nop 1\nv_add_f32_dpp v{v}, v{v}, v{v} row_ror:{r} row_mask:0xf bank_mask:0xf")

def post_flag(k, soff, vt, va, wave0=True):
    L=k.label("pf")
    if wave0: k(f"s_cmp_eq_u32 s3, 0\ns_cbranch_scc0 {L}")
    k(f"""v_mov_b32 v{vt}, s60
    v_mov_b32 v{va}, 0
    s_mov_b64 exec, 1
    buffer_store_dword v{vt}, v{va}, {WS}, {soff} offen sc1
    s_mov_b64 exec, -1""")
    if wave0: k(f"{L}:")

def poll(k, va, soff, vt, sleep=0):
    L=k.label("pl"); D=k.label("pd")
    k(f"""{L}:
    buffer_load_dword v{vt}, v{va}, {WS}, {soff} offen sc1
    s_waitcnt vmcnt(0)
    v_cmp_ne_u32 vcc, s60, v{vt}
    s_cbranch_vccz {D}
    {f"s_sleep {sleep}" if sleep else ""}
    s_sub_u32 s61, s61, 1
    s_cbranch_scc0 {L}
    s_mov_b32 s61, 0
    {D}:""")

def check_or_poll(k, va, soff, vt):
    D=k.label("cd")
    k(f"v_cmp_ne_u32 vcc, s60, v{vt}\ns_cbranch_vccz {D}")
    poll(k, va, soff, vt)
    k(f"{D}:")

class Clk:
    def __init__(self, sv=None, sl=None):
        self.t=0; self.tv=0.0; self.tl=0.0
        self.sv=float(os.environ.get("SLV","2")) if sv is None else sv
        self.sl=float(os.environ.get("SLL","2")) if sl is None else sl
        self.cv=float(os.environ.get("CV","4"))
    def cost(self, asm):
        if asm.startswith("buffer"):
            return ("v", self.cv if "x4" in asm else self.cv/2 if "x2" in asm else self.cv/4)
        if asm.startswith("ds_"): return ("l", 2.0 if "b128" in asm else 1.0)
        return (None,0)
    def ok(self, asm):
        u,c=self.cost(asm)
        if u=="v": return self.tv<=self.t+self.sv
        if u=="l": return self.tl<=self.t+self.sl
        return True
    def use(self, asm):
        u,c=self.cost(asm)
        if u=="v": self.tv=max(self.tv,self.t)+c
        if u=="l": self.tl=max(self.tl,self.t)+c

class Stream:
    def __init__(self, k, clk=None): self.k=k; self.q=[]; self.clk=clk
    def add(self, items): self.q += items
    def pop(self, n=1, force=False):
        c=self.clk
        while n>0 and self.q:
            x=self.q[0]
            if isinstance(x,tuple) and c and not force:
                if x[0]=="i" and not c.ok(x[2]): return n
                if x[0]=="t" and c.t<x[1]: return n
            self.q.pop(0)
            if x is None: n-=1; continue
            if isinstance(x,tuple):
                if x[0]=="t": continue
                if x[0]=="w": x[1].wait(x[2]); continue
                if x[0]=="x": x[1](); n-=1; continue
                if x[0]=="0": self.k(x[1]); continue
                if x[0]=="z": x[1](); continue
                self.k(x[2]); x[1].issue(x[3])
                if c: c.use(x[2])
            else: self.k(x)
            n-=1
        return n
    def until(self, cnt, tag):
        while tag not in cnt.tags:
            assert self.q, ("missing", tag)
            self.pop(1,True)
    def flush(self): self.pop(100000,True)
def tick(clk, streams, n=2, first=None):
    clk.t+=1
    if first is not None and first.q and isinstance(first.q[0],tuple) and first.q[0][0]=="i": n-=1-first.pop(1)
    for s in streams: n=s.pop(n)
```

```python
NAME = "sequential_preLN__ssm_conv_h3__glu_gated_bilinear__prompt"
HEADER = open("cdna_kernels/" + NAME + ".s.ref").read().split("; Override launch")[0]

class Kern:
    def __init__(self, name, grid, block, lds, vgpr=256, sgpr=102, agpr=0, wgy=False):
        self.name, self.grid, self.block, self.lds = name, grid, block, lds
        self.vgpr, self.sgpr, self.agpr = vgpr, sgpr, agpr
        self.lines = []
        self.uid = 0
        self.wgy = wgy
    def e(self, s):
        for l in s.strip("\n").split("\n"):
            l = l.strip()
            if l: self.lines.append(("" if l.endswith(":") else "    ") + l)
    __call__ = e
    def label(self, base):
        self.uid += 1
        return f"L_{self.name[:6]}_{base}_{self.uid}"
    def srd(self, d, base, nbytes):
        if d != base:
            self.e(f"s_mov_b32 s{d}, s{base}\ns_mov_b32 s{d+1}, s{base+1}")
        self.e(f"s_mov_b32 s{d+2}, {nbytes}\ns_mov_b32 s{d+3}, 0x00020000")
    def text(self):
        o = [f".globl {self.name}", ".p2align 8", f".type {self.name},@function", f"{self.name}:"] + self.lines
        return "\n".join(o) + "\n"
    def desc(self):
        acc = (self.vgpr + 3) // 4 * 4
        tot = acc + self.agpr if self.agpr else self.vgpr
        o = [".p2align 6", f".amdhsa_kernel {self.name}",
             f"  .amdhsa_next_free_vgpr {tot}", f"  .amdhsa_next_free_sgpr {self.sgpr}",
             f"  .amdhsa_accum_offset {acc}", "  .amdhsa_group_segment_fixed_size 0",
             "  .amdhsa_kernarg_size 104", "  .amdhsa_user_sgpr_count 2",
             "  .amdhsa_user_sgpr_kernarg_segment_ptr 1", "  .amdhsa_system_sgpr_workgroup_id_x 1"]
        if self.wgy: o.append("  .amdhsa_system_sgpr_workgroup_id_y 1")
        o += ["  .amdhsa_float_denorm_mode_32 3", "  .amdhsa_float_denorm_mode_16_64 3", ".end_amdhsa_kernel"]
        return "\n".join(o) + "\n"

def build_file(kerns, launches=None):
    launches = launches or kerns
    o = HEADER
    for k in launches:
        o += f"; @launch kernel={k.name} grid=({k.grid[0]},{k.grid[1]},{k.grid[2]}) block=({k.block},1,1) lds={k.lds}\n"
    o += '.amdgcn_target "amdgcn-amd-amdhsa--gfx950"\n.text\n'
    for k in kerns: o += k.text()
    o += '.section .rodata,"a"\n'
    for k in kerns: o += k.desc()
    return o

def vr(a, n=1):
    return f"v{a}" if n == 1 else f"v[{a}:{a+n-1}]"
def sr(a, n=1):
    return f"s{a}" if n == 1 else f"s[{a}:{a+n-1}]"
def ar(a, n=1):
    return f"a{a}" if n == 1 else f"a[{a}:{a+n-1}]"

import os
PROF = int(os.environ.get("PROF","0"))
WS_PROF = 0x1800000
DG = int(os.environ.get("DG","0")); DGW = int(os.environ.get("DGW","5")); DGN = int(os.environ.get("DGN","1"))
class Prof:
    def __init__(self, k, kid, wpw):
        self.k, self.kid, self.wpw = k, kid, wpw
        if PROF: k.sgpr = 102
    def start(self):
        if not PROF: return
        self.k("s_memrealtime s[64:65]\ns_memtime s[68:69]\ns_load_dwordx2 s[96:97], s[0:1], 96\nv_lshrrev_b32 v1, 6, v0\ns_nop 1\nv_readfirstlane_b32 s98, v1\ns_mov_b32 s99, s2")
        for i in range(1,14): self.k(f"s_mov_b32 s{68+2*i}, 0")
    def stamp(self, i, grp=1):
        if PROF!=grp: return
        self.k(f"{'s_memrealtime' if DG else 's_memtime'} s[{68+2*i}:{69+2*i}]")
    def end(self):
        if not PROF: return
        k=self.k
        if DG:
            k(f"""s_waitcnt vmcnt(0)
            s_memrealtime s[94:95]
            s_waitcnt lgkmcnt(0)
            s_sub_u32 s98, s99, {DGW}
            s_cmp_ge_u32 s98, {DGN}
            s_cbranch_scc1 DG_OUT
            s_sub_u32 s98, s{68+2*DG}, s64
            s_min_u32 s98, s98, 6000
            s_lshl_b32 s98, s98, 4
            DG_LP:
            s_sleep 8
            s_memrealtime s[66:67]
            s_waitcnt lgkmcnt(0)
            s_sub_u32 s66, s66, s94
            s_cmp_lt_u32 s66, s98
            s_cbranch_scc1 DG_LP
            DG_OUT:""")
            return
        k(f"""s_waitcnt vmcnt(0)
        s_memrealtime s[66:67]
        s_memtime s[94:95]
        s_waitcnt lgkmcnt(0)
        s_mul_i32 s99, s99, {self.wpw}
        s_add_u32 s99, s99, s98
        s_lshl_b32 s99, s99, 6
        s_add_u32 s99, s99, {WS_PROF + self.kid*0x40000}
        s_add_u32 s96, s96, s99
        s_addc_u32 s97, s97, 0
        s_mov_b32 s98, 64
        s_mov_b32 s99, 0x00020000
        s_mov_b64 exec, 1
        v_mov_b32 v0, 0
        v_mov_b32 v2, s64
        v_mov_b32 v3, s66
        buffer_store_dwordx2 v[2:3], v0, s[96:99], 0 offen""")
        for i in range(14):
            k(f"v_mov_b32 v2, s{68+2*i}\nbuffer_store_dword v2, v0, s[96:99], 0 offen offset:{8+4*i}\ns_nop 0")
        k("s_waitcnt vmcnt(0)")
```

```python
from fzc import *
WAVE_LDS = 4*4160 + 4608
CB = 163840 - 4*WAVE_LDS
ASW=int(os.environ.get('ASW','0'))
FEARLY=int(os.environ.get('FEARLY','1')); FNT=int(os.environ.get('FNT','0'))
FPOST=int(os.environ.get('FPOST','0')); QL=int(os.environ.get('QL','0'))
def fdma_(k,c):
    k(f"s_add_u32 m0, s46, {4160*c+32}\ns_nop 0")
    for i in range(4):
        s = "s[52:55]" if c&1 else "s[48:51]"
        k(f"buffer_load_dwordx4 v{124+c}, {s}, 0 offen offset:{1024*i}"+(" nt" if c==0 and FNT else "")+" lds")

def prologue(k,P):
    k("s_cmp_ge_u32 s2, 256\ns_cbranch_scc1 FZ_END"); P.start()
    k("""
    s_load_dwordx4 s[4:7], s[0:1], 0
    s_load_dwordx4 s[8:11], s[0:1], 16
    s_load_dwordx4 s[12:15], s[0:1], 32
    s_load_dwordx2 s[56:57], s[0:1], 96
    s_load_dwordx4 s[40:43], s[0:1], 56
    s_load_dwordx2 s[44:45], s[0:1], 72
    v_lshrrev_b32 v3, 6, v0
    v_and_b32 v1, 15, v0
    v_lshrrev_b32 v2, 4, v0
    v_readfirstlane_b32 s3, v3
    s_mov_b32 s61, 20000
    s_cmp_ge_u32 s2, 208
    s_cbranch_scc1 FZ_STATS
    s_cmp_ge_u32 s2, 160
    s_cbranch_scc1 FZ_AROLE
    """)
def wsrd(k):
    WSOFF=int(os.environ.get('WSOFF','0'),0)
    if WSOFF: k(f"s_add_u32 s56, s56, {WSOFF}\ns_addc_u32 s57, s57, 0")
    k(f"s_mov_b32 s58, {WS_SZ}\ns_mov_b32 s59, 0x00020000\ns_mov_b32 s60, {WS_FL}\ns_load_dword s60, s[56:57], s60")
def mktag(k):
    k("s_waitcnt lgkmcnt(0)\ns_mul_i32 s60, s60, 1664525\ns_add_u32 s60, s60, 1013904223")

KILL=int(os.environ.get('KILL','0'))
JCL=int(os.environ.get('JCL','0')); CLS=int(os.environ.get('CLS','46')); CLA=(6208-64*CLS+191)//192
def clear(k,n,base,first):
    k(f"""s_sub_u32 s34, s2, {first}
    s_lshl_b32 s34, s34, 2
    s_add_u32 s34, s34, s3
    s_mul_i32 s34, s34, {1024*n}
    s_add_u32 s34, s34, {WS_HH+base}
    v_lshlrev_b32 v4, 4, v0
    v_mov_b32 v8, -1
    v_mov_b32 v9, -1
    v_mov_b32 v10, -1
    v_mov_b32 v11, -1""")
    for i in range(n):
        k(f"buffer_store_dwordx4 v[8:11], v4, {WS}, s34 offen offset:{1024*(i&3)} sc1")
        if (i&3)==3: k("s_add_u32 s34, s34, 4096")
    k(f"s_sub_u32 s34, s2, 160\ns_lshl_b32 s34, s34, 7\ns_add_u32 s34, s34, {FL_CL}\ns_waitcnt vmcnt(0)\ns_barrier")
    post_flag(k,"s34",4,5)

def tile(k,P):
    if KILL&1: k("s_branch FZ_FIN")
    k(f"""
    s_and_b32 s32, s2, 15
    s_lshr_b32 s33, s2, 4
    s_mul_i32 s34, s32, 128*1280
    s_lshl_b32 s36, s33, 7
    s_add_u32 s34, s34, s36
    v_mul_u32_u24 v3, 8*1280, v2
    v_lshlrev_b32 v4, 3, v1
    v_add3_u32 v3, v3, v4, s34
    v_add_u32 v4, 4*1280, v3
    v_subrev_u32 v5, 3*1280, v3
    s_lshl_b32 s36, s33, 9
    v_lshlrev_b32 v6, 5, v1
    v_add_u32 v6, s36, v6
    s_lshl_b32 s35, s2, 2
    s_add_u32 s35, s35, s3
    s_lshl_b32 s36, s35, 12
    s_lshr_b32 s37, s35, 1
    s_lshl_b32 s37, s37, 2
    s_waitcnt lgkmcnt(0)
    """)
    P.stamp(1,5)
    k.srd(20,6,NB_ACT); k.srd(28,10,640*8)
    vm=Cnt(k,"vmcnt",63)
    KR=8; VR=30; QR=46; SH=62
    k(f"buffer_load_dwordx4 v[{SH}:{SH+3}], v6, s[28:31], 0 offen"); vm.issue()
    k(f"buffer_load_dwordx4 v[{SH+4}:{SH+7}], v6, s[28:31], 0 offen offset:16"); vm.issue("sh")
    def rowaddr(r):
        if r < 0: return "v5", (r+3)*1280
        if r < 4: return "v3", r*1280
        return "v4", (r-4)*1280
    for r in range(-3,8):
        a,o = rowaddr(r); k(f"buffer_load_dwordx2 v[{KR+2*(r+3)}:{KR+2*(r+3)+1}], {a}, s[20:23], 0 offen offset:{o} nt"); vm.issue("k")
    P.stamp(2,5)
    k.srd(24,8,NB_ACT)
    for r in range(8):
        a,o = rowaddr(r); k(f"buffer_load_dwordx2 v[{VR+2*r}:{VR+2*r+1}], {a}, s[24:27], 0 offen offset:{o} nt"); vm.issue("v")
    P.stamp(3,5)
    k.srd(16,4,NB_ACT)
    def qld():
        for r in range(8):
            a,o = rowaddr(r); k(f"buffer_load_dwordx2 v[{QR+2*r}:{QR+2*r+1}], {a}, s[16:19], 0 offen offset:{o} nt"); vm.issue("q")
    if QL==0: qld()
    P.stamp(4,5)
    wsrd(k)
    k(f"""
    s_load_dword s47, s[14:15], s37
    s_add_u32 s48, s12, s36
    s_addc_u32 s49, s13, 0
    s_mul_i32 s46, s3, {WAVE_LDS}
    s_add_u32 s46, s46, {CB}
    v_and_b32 v124, 63, v0
    v_lshlrev_b32 v124, 4, v124
    v_add_u32 v125, 2, v124
    v_add_u32 v126, 4, v124
    v_add_u32 v127, 6, v124
    """)
    k.srd(48,48,4096); k.srd(52,48,4094)
    def fdma(c):
        k(f"s_add_u32 m0, s46, {4160*c+32}\ns_nop 0")
        for i in range(4):
            s = "s[52:55]" if c&1 else "s[48:51]"
            k(f"buffer_load_dwordx4 v{124+c}, {s}, 0 offen offset:{1024*i}"+(" nt" if c==0 and FNT else "")+" lds"); vm.issue()
    for c in range(FEARLY): fdma(c)
    k(f"""
    s_lshl_b32 s36, s33, 18
    s_lshl_b32 s37, s32, 8
    s_add_u32 s36, s36, s37
    v_lshlrev_b32 v6, 14, v1
    v_lshlrev_b32 v7, 4, v2
    v_add3_u32 v6, v6, v7, s36
    v_add_u32 v7, 0x2000, v6
    s_mov_b32 s38, 0xffff0000
    s_mov_b32 s39, {WS_QT}
    s_mov_b32 s40, 0x05040100
    s_mov_b32 s41, 0x07060302
    s_mov_b32 s42, 4096
    s_mov_b32 s43, {WS_QT+4096}
    """)
    CF=70; KF=86; AC=108
    P.stamp(1); P.stamp(5,5); vm.wait("sh"); P.stamp(6,5)
    for c in range(4):
        for j in range(4):
            src = SH + 2*c + (j>>1)
            if j&1: k(f"v_and_b32 v{CF+4*j+c}, s38, v{src}")
            else:   k(f"v_lshlrev_b32 v{CF+4*j+c}, 16, v{src}")
    vm.wait("k"); P.stamp(8,5)
    if QL==1: qld()
    for p in range(2):
        for r in range(11):
            k(f"v_lshlrev_b32 v{KF+2*r}, 16, v{KR+2*r+p}\nv_and_b32 v{KF+2*r+1}, s38, v{KR+2*r+p}")
        for r in range(8):
            for j in range(4):
                a = KF+2*(r+3-j); c = CF+4*j+2*p; d = AC+2*r
                if j==0: k(f"v_pk_mul_f32 v[{d}:{d+1}], v[{a}:{a+1}], v[{c}:{c+1}]")
                else:    k(f"v_pk_fma_f32 v[{d}:{d+1}], v[{a}:{a+1}], v[{c}:{c+1}], v[{d}:{d+1}]")
        vm.wait("v")
        for r in range(8):
            k(f"v_lshlrev_b32 v{KF+2*r}, 16, v{VR+2*r+p}\nv_and_b32 v{KF+2*r+1}, s38, v{VR+2*r+p}")
        for r in range(8):
            d=AC+2*r; a=KF+2*r
            k(f"v_pk_mul_f32 v[{d}:{d+1}], v[{d}:{d+1}], v[{a}:{a+1}]")
        for h in range(2):
            o = SH+4*h
            for m in range(4):
                k(f"v_cvt_pk_bf16_f32 v{o+m}, v{AC+2*(7-2*m)+h}, v{AC+2*(6-2*m)+h}")
            c = 2*p+h
            ad = "v6" if c<2 else "v7"
            k(f"buffer_store_dwordx4 v[{o}:{o+3}], {ad}, {WS}, {'s42' if c&1 else '0'} offen sc1"); vm.issue()
        if p==0: k("s_nop 1")
    P.stamp(9,5); vm.wait("q"); P.stamp(10,5)
    for c in range(4):
        o = KF+4*c
        for m in range(4):
            k(f"v_perm_b32 v{o+m}, v{QR+2*(2*m+1)+(c>>1)}, v{QR+2*(2*m)+(c>>1)}, s{41 if c&1 else 40}")
        ad = "v6" if c<2 else "v7"
        k(f"buffer_store_dwordx4 v[{o}:{o+3}], {ad}, {WS}, s{43 if c&1 else 39} offen sc1")
    if not FPOST:
        for c in range(FEARLY,4): fdma(c)
    P.stamp(2)
    mktag(k)

def arole(k,P):
    k(f"""
    FZ_AROLE:
    s_lshr_b32 s63, s2, 3
    s_mul_i32 s63, s63, {ASW}
    s_add_u32 s63, s63, s2
    s_and_b32 s63, s63, 7
    s_andn2_b32 s32, s2, 7
    s_or_b32 s63, s63, s32
    s_sub_u32 s32, s63, 160
    s_cmp_ge_u32 s32, 24
    s_cselect_b32 s33, 1, 0
    s_mul_i32 s34, s33, 24
    s_sub_u32 s32, s32, s34
    v_and_b32 v0, 63, v0
    v_lshrrev_b32 v3, 3, v0
    v_bfe_u32 v4, v0, 1, 2
    v_and_b32 v5, 3, v3
    v_xor_b32 v4, v4, v5
    s_and_b32 s34, s3, 1
    v_xor_b32 v4, s34, v4
    v_mul_u32_u24 v3, 3072, v3
    v_lshl_add_u32 v3, v4, 5, v3
    v_and_b32 v4, 1, v0
    v_lshl_add_u32 v3, v4, 4, v3
    s_mul_i32 s34, s3, {8*3072}
    s_lshl_b32 s35, s32, 7
    s_add_u32 s34, s34, s35
    s_lshl_b32 s35, s3, 10
    s_cmp_eq_u32 s33, 1
    s_waitcnt lgkmcnt(0)
    s_cselect_b32 s40, s42, s40
    s_cselect_b32 s41, s43, s41
    """)
    P.stamp(1,5)
    k.srd(20,40,640*3072)
    AORD=int(os.environ.get('AORD','0')); ANT=os.environ.get('ANT','nt').replace('_',' ')
    order=list(range(20))
    if AORD&2: order=[(5*i)%20+(i//4) for i in range(20)]
    if AORD&4: order=[(10*i)%20+(i//2) for i in range(20)]
    if AORD&1:
        k(f"""s_and_b32 s36, s3, 1
        s_lshl_b32 s36, s36, 5
        v_xor_b32 v3, s36, v3
        v_xor_b32 v9, 32, v3
        s_mul_i32 s34, s3, {160*3072}
        s_lshl_b32 s35, s32, 7
        s_add_u32 s34, s34, s35
        s_mul_i32 s35, s3, 20480""")
    st=(8*3072,1024) if AORD&1 else (32*3072,4096)
    for ks in order:
        k(f"s_add_u32 m0, s35, {st[1]*ks}\ns_add_u32 s36, s34, {st[0]*ks}\nbuffer_load_dwordx4 v{9 if (AORD&1 and ks&1) else 3}, s[20:23], s36 offen {ANT} lds")
    P.stamp(2,5)
    wsrd(k)
    k(f"""
    v_lshrrev_b32 v4, 4, v0
    v_bfe_u32 v5, v0, 2, 2
    v_lshl_add_u32 v6, v4, 3, v5
    v_lshlrev_b32 v6, 7, v6
    v_and_b32 v7, 1, v4
    v_xor_b32 v7, v7, v5
    v_xor_b32 v7, s3, v7
    v_lshl_add_u32 v6, v7, 5, v6
    v_and_b32 v7, 3, v0
    v_lshl_add_u32 v5, v7, 3, v6
    v_add_u32 v8, 0x10000, v5
    v_bfe_u32 v6, v0, 3, 1
    v_mul_u32_u24 v6, 10240, v6
    v_lshl_add_u32 v6, v4, 7, v6
    v_and_b32 v7, 7, v0
    v_lshl_add_u32 v6, v7, 4, v6
    s_lshl_b32 s34, s32, 2
    s_add_u32 s34, s34, s3
    s_mul_i32 s34, s34, 20480
    s_mul_i32 s35, s33, {MS}
    s_add_u32 s34, s34, s35
    s_add_u32 s34, s34, {WS_WP}
    v_mov_b32 v12, 0x3f803f80
    v_mov_b32 v13, v12
    v_mov_b32 v14, v12
    v_mov_b32 v15, v12
    s_mov_b32 s38, 0xffff0000
    """)
    mktag(k)
    P.stamp(1)
    k("s_waitcnt vmcnt(0)\ns_barrier")
    P.stamp(2)
    F=16; SM=96; T=100
    lg=Cnt(k,"lgkmcnt",15)
    def rd(ks):
        va,off=("v5",ks*4096) if ks<16 else ("v8",ks*4096-65536)
        k(f"ds_read_b64_tr_b16 v[{F+4*ks}:{F+4*ks+1}], {va} offset:{off}"); lg.issue()
        k(f"ds_read_b64_tr_b16 v[{F+4*ks+2}:{F+4*ks+3}], {va} offset:{off+512}"); lg.issue(ks)
    for ks in range(6): rd(ks)
    for ks in range(20):
        if ks+6<20: rd(ks+6)
        lg.wait(ks)
        k(f"v_mfma_f32_16x16x32_bf16 v[{SM}:{SM+3}], v[12:15], v[{F+4*ks}:{F+4*ks+3}], {'0' if ks==0 else f'v[{SM}:{SM+3}]'}")
    k(f"s_nop 7\ns_nop 1\nv_mul_f32 v{SM}, {hex(f2u(-1.0/640))}, v{SM}\nv_mov_b32 v{SM+1}, v{SM}")
    for ks in range(20):
        t=T+8*(ks&1)
        for j in range(4):
            k(f"v_lshlrev_b32 v{t+2*j}, 16, v{F+4*ks+j}\nv_and_b32 v{t+2*j+1}, s38, v{F+4*ks+j}")
        for j in range(4):
            k(f"v_pk_add_f32 v[{t+2*j}:{t+2*j+1}], v[{t+2*j}:{t+2*j+1}], v[{SM}:{SM+1}]")
        for j in range(4):
            k(f"v_cvt_pk_bf16_f32 v{F+4*ks+j}, v{t+2*j}, v{t+2*j+1}")
        k(f"buffer_store_dwordx4 v[{F+4*ks}:{F+4*ks+3}], v6, {WS}, s34 offen offset:{512*(ks&7)} sc1")
        if (ks&7)==7: k("s_add_u32 s34, s34, 4096")
    P.stamp(3)
    k(f"s_lshl_b32 s34, s63, 7\ns_add_u32 s34, s34, {FL_F0}\ns_waitcnt vmcnt(0)\ns_barrier")
    post_flag(k,"s34",4,5)
    P.stamp(4)
    if JCL: clear(k,CLA,64*CLS*1024,160)
    P.stamp(5)
    k("s_branch FZ_JOIN")

def stats(k,P):
    k(f"""
    FZ_STATS:
    {'s_branch FZ_FIN' if KILL&2 else ''}
    s_sub_u32 s32, s2, 208
    s_mul_i32 s33, s32, 48
    v_add_u32 v3, s33, v2
    v_mul_u32_u24 v3, 1280, v3
    v_lshl_add_u32 v3, v1, 4, v3
    s_mov_b32 s38, 0xffff0000
    s_mov_b32 s34, {16*1280}
    s_mov_b32 s35, {32*1280}
    s_waitcnt lgkmcnt(0)
    """)
    k.srd(16,4,NB_ACT)
    R=8; X=72
    vm=Cnt(k,"vmcnt",63)
    for p in range(3):
        for i in range(5):
            r=R+20*p+4*i
            k(f"buffer_load_dwordx4 v[{r}:{r+3}], v3, s[16:19], {['0','s34','s35'][p]} offen offset:{256*i} nt"); vm.issue((p,i))
    wsrd(k)
    k("v_lshlrev_b32 v2, 2, v2\nv_cmp_eq_u32 s[36:37], 0, v1\nv_and_b32 v0, 63, v0")
    for p in range(3):
        for i in range(5):
            vm.wait((p,i))
            for j in range(4):
                s=R+20*p+4*i+j; d=X+2*(4*i+j)
                k(f"v_lshlrev_b32 v{d}, 16, v{s}\nv_and_b32 v{d+1}, s38, v{s}")
        k(f"v_pk_add_f32 v[4:5], v[{X}:{X+1}], v[{X+2}:{X+3}]")
        k(f"v_pk_add_f32 v[6:7], v[{X+4}:{X+5}], v[{X+6}:{X+7}]")
        for i in range(4,20,2):
            k(f"v_pk_add_f32 v[4:5], v[4:5], v[{X+2*i}:{X+2*i+1}]")
            k(f"v_pk_add_f32 v[6:7], v[6:7], v[{X+2*i+2}:{X+2*i+3}]")
        k("v_pk_add_f32 v[4:5], v[4:5], v[6:7]\nv_add_f32 v4, v4, v5")
        dpp_allreduce16(k,4)
        k(f"v_mul_f32 v4, {hex(f2u(-1.0/640))}, v4\nv_mov_b32 v5, v4")
        for i in range(20):
            k(f"v_pk_add_f32 v[{X+2*i}:{X+2*i+1}], v[{X+2*i}:{X+2*i+1}], v[4:5]")
        k(f"v_pk_mul_f32 v[112:113], v[{X}:{X+1}], v[{X}:{X+1}]")
        k(f"v_pk_mul_f32 v[6:7], v[{X+2}:{X+3}], v[{X+2}:{X+3}]")
        for i in range(2,20,2):
            k(f"v_pk_fma_f32 v[112:113], v[{X+2*i}:{X+2*i+1}], v[{X+2*i}:{X+2*i+1}], v[112:113]")
            k(f"v_pk_fma_f32 v[6:7], v[{X+2*i+2}:{X+2*i+3}], v[{X+2*i+2}:{X+2*i+3}], v[6:7]")
        k("v_pk_add_f32 v[6:7], v[112:113], v[6:7]\nv_add_f32 v6, v6, v7")
        dpp_allreduce16(k,6)
        k(f"""
        v_mov_b32 v7, {hex(f2u(1e-5))}
        v_fmac_f32 v7, {hex(f2u(1.0/640))}, v6
        v_rsq_f32 v7, v7
        s_nop 0
        v_mul_f32 v4, v4, v7
        s_mov_b64 exec, s[36:37]
        ds_write_b32 v2, v7 offset:{64*p}
        ds_write_b32 v2, v4 offset:{256+64*p}
        s_mov_b64 exec, -1
        """)
    L=k.label("st")
    k(f"""
    s_mul_i32 s33, s32, 192
    v_lshlrev_b32 v3, 4, v1
    v_add_u32 v3, s33, v3
    v_cmp_gt_u32 vcc, 0x2000, v3
    v_cmp_gt_u32 s[34:35], 12, v1
    v_cmp_gt_u32 s[36:37], 32, v0
    v_lshrrev_b32 v4, 4, v0
    v_lshl_add_u32 v3, v4, 13, v3
    v_lshlrev_b32 v4, 4, v0
    s_and_b64 s[34:35], s[34:35], vcc
    s_and_b64 s[34:35], s[34:35], s[36:37]
    s_mov_b32 s33, {WS_A}
    """)
    mktag(k)
    k(f"""
    s_lshl_b32 s36, s2, 7
    s_add_u32 s36, s36, {FL_F0}
    s_barrier
    s_cmp_eq_u32 s3, 0
    s_cbranch_scc0 {L}
    ds_read_b128 v[8:11], v4
    s_waitcnt lgkmcnt(0)
    s_mov_b64 exec, s[34:35]
    buffer_store_dwordx4 v[8:11], v3, {WS}, s33 offen sc1
    s_mov_b64 exec, -1
    s_waitcnt vmcnt(0)
    """)
    post_flag(k,"s36",4,5,wave0=False)
    k(f"{L}:")
    P.stamp(2)
    LD=1024
    k(f"""
    s_cmp_lt_u32 s32, 16
    s_cbranch_scc1 {'FZ_SCLR' if JCL else 'FZ_JOIN'}
    s_sub_u32 s32, s32, 16
    s_lshr_b32 s33, s32, 1
    s_and_b32 s34, s32, 1
    s_mul_i32 s35, s33, 96
    s_mul_i32 s36, s3, 24
    s_add_u32 s35, s35, s36
    s_mul_i32 s35, s35, 1280
    s_mul_i32 s36, s34, 640
    s_add_u32 s35, s35, s36
    s_mul_i32 s36, s3, 15360
    s_add_u32 s36, s36, {LD}
    v_lshlrev_b32 v3, 4, v0
    """)
    k.srd(24,44,1536*1280)
    for i in range(15):
        k(f"""v_add_u32 v4, {64*i}, v0
        v_mul_u32_u24 v4, 205, v4
        v_lshrrev_b32 v4, 13, v4
        v_mul_u32_u24 v4, 640, v4
        v_add_u32 v{8+i}, v4, v3""")
        if (i&3)==0:
            k(f"s_mov_b32 m0, s36\ns_add_u32 s36, s36, 4096")
            if i: k("s_add_u32 s35, s35, 4096")
        k(f"buffer_load_dwordx4 v{8+i}, s[24:27], s35 offen offset:{1024*(i&3)} nt lds")
    k(f"""
    v_lshrrev_b32 v4, 4, v0
    v_bfe_u32 v5, v0, 2, 1
    v_bfe_u32 v6, v0, 3, 1
    v_lshl_add_u32 v5, v6, 2, v5
    v_and_b32 v6, 3, v0
    s_mul_i32 s35, s3, 160
    s_add_u32 s35, s35, {LD}
    """)
    AD=24
    for n in range(3):
        k(f"""
        v_add_u32 v7, {4*n}, v4
        v_mul_u32_u24 v40, 43, v7
        v_lshrrev_b32 v40, 7, v40
        v_mul_u32_u24 v41, 3, v40
        v_sub_u32 v7, v7, v41
        v_cmp_gt_u32 vcc, 2, v7
        v_lshlrev_b32 v7, 1, v7
        v_mul_u32_u24 v40, 24, v40
        v_cndmask_b32 v7, 16, v7, vcc
        v_add3_u32 v7, v7, v40, v5
        v_mov_b32 v41, 8
        v_cndmask_b32 v41, 2, v41, vcc
        v_add_u32 v41, v41, v7
        v_mul_u32_u24 v7, 640, v7
        v_mul_u32_u24 v41, 640, v41
        v_add_u32 v7, s35, v7
        v_add_u32 v41, s35, v41
        v_lshl_add_u32 v{AD+4*n}, v6, 4, v7
        v_lshl_add_u32 v{AD+4*n+1}, v6, 4, v41
        v_lshl_add_u32 v{AD+4*n+2}, v6, 3, v7
        v_lshl_add_u32 v{AD+4*n+3}, v6, 3, v41
        """)
    k(f"""
    s_lshl_b32 s35, s34, 2
    s_add_u32 s35, s35, s3
    s_mul_i32 s35, s35, 245760
    s_mul_i32 s36, s33, 15360
    s_add_u32 s35, s35, s36
    s_add_u32 s35, s35, {WS_WD}
    s_lshl_b32 s36, s32, 7
    s_add_u32 s36, s36, {FL_FD}
    s_waitcnt vmcnt(0)
    s_barrier
    """)
    O=48
    for n in range(3):
        for a in range(5):
            o=O+20*n+4*a; va=AD+4*n+(0 if a<4 else 2)
            off = 64*(a>>1)+8*(a&1) if a<4 else 128
            k(f"ds_read_b64_tr_b16 v[{o}:{o+1}], v{va} offset:{off}")
            k(f"ds_read_b64_tr_b16 v[{o+2}:{o+3}], v{va+1} offset:{off}")
        k("s_waitcnt lgkmcnt(0)")
        for a in range(5):
            i=5*n+a; o=O+4*i
            k(f"buffer_store_dwordx4 v[{o}:{o+3}], v3, {WS}, s35 offen offset:{1024*(i&3)} sc1")
            if (i&3)==3: k("s_add_u32 s35, s35, 4096")
    k("s_waitcnt vmcnt(0)\ns_barrier")
    post_flag(k,"s36",4,5)
    P.stamp(3)
    k("s_branch FZ_JOIN")
    if JCL:
        k("FZ_SCLR:"); clear(k,CLS,0,208); P.stamp(5); k("s_branch FZ_JOIN")
```

```python
from fzc import *
from fz1 import WAVE_LDS, CB, FEARLY, FPOST, fdma_, JCL
OOB="0x80000000"
E_=lambda n,d: int(os.environ.get(n,str(d)))
def wreg(n):
    if n<12: return ("v",208+4*n)
    if n<28: return ("v",112+4*(n-12))
    b=[224,64,192,32][(n-28)//8]
    return ("a",b+4*((n-28)&7))
def rr(p,n=4): return f"{p[0]}[{p[1]}:{p[1]+n-1}]"
def wload(n):
    ks,a=divmod(n,3)
    so=(27 if a==1 else 24)+(ks>>3)
    return f"buffer_load_dwordx4 {rr(wreg(n))}, {'v7' if a==2 else 'v6'}, {WS}, s{so} offen offset:{512*(ks&7)} sc1"
def g1_pre(k):
    k(f"""
    s_bfe_u32 s20, s2, 0x20001
    s_lshl_b32 s20, s20, 2
    s_bfe_u32 s21, s2, 0x20003
    s_add_u32 s20, s20, s21
    s_and_b32 s21, s2, 1
    s_lshl_b32 s21, s21, 3
    s_lshr_b32 s22, s2, 5
    s_add_u32 s21, s21, s22
    s_lshl_b32 s22, s21, 2
    s_add_u32 s22, s22, s3
    s_mul_i32 s24, s22, 30720
    s_add_u32 s24, s24, {WS_WP}
    s_add_u32 s25, s24, 4096
    s_add_u32 s26, s24, 8192
    s_add_u32 s27, s24, {MS}
    s_add_u32 s28, s25, {MS}
    s_add_u32 s29, s26, {MS}
    s_mov_b32 s30, {FL_F0+160*128}
    s_lshr_b32 s23, s2, 7
    s_lshl_b32 s31, s3, 3
    s_add_u32 s23, s23, s31
    s_lshl_b32 s23, s23, 7
    s_add_u32 s23, s23, {FL_FD}
    s_lshr_b32 s53, s2, 5
    s_mul_i32 s53, s53, 245760
    s_mul_i32 s31, s3, 61440
    s_add_u32 s53, s53, s31
    s_add_u32 s53, s53, {WS_WD}
    s_lshl_b32 s50, s3, 12
    s_mul_i32 s51, s20, 81920
    s_add_u32 s51, s51, s50
    s_add_u32 s51, s51, {WS_HB}
    v_lshrrev_b32 v8, 4, v0
    v_and_b32 v9, 7, v0
    v_lshl_add_u32 v8, v8, 3, v9
    v_lshlrev_b32 v8, 4, v8
    v_bfe_u32 v9, v0, 3, 1
    v_mul_u32_u24 v6, 10240, v9
    v_add_u32 v6, v6, v8
    v_mul_u32_u24 v7, {MS}, v9
    v_add_u32 v8, 20480, v8
    v_add_u32 v7, v7, v8
    """)

def wdreg(n):
    if n<32: return ("a",[160,0,96,128][n//8]+4*(n&7))
    if n<40: return ("v",176+4*(n-32))
    return wreg(n-28)
def wdload(vm,n,va):
    o=[("i",vm,f"buffer_load_dwordx4 {rr(wdreg(n))}, v{va}, {WS}, s53 offen offset:{1024*(n&3)} sc1",("Wd",n))]
    if (n&3)==3: o.append(("0","s_add_u32 s53, s53, 4096"))
    return o
def h0addr(a,b):
    return [f"v_min_u32 v{a}, 39, v0", f"s_lshl_b32 s30, s3, 10", f"v_and_b32 v{b}, 7, v{a}", f"v_lshrrev_b32 v{a}, 3, v{a}",
            f"s_add_u32 s30, s30, {FL_H0}", f"v_lshl_add_u32 v{a}, v{a}, 5, v{b}", f"s_add_u32 s31, s30, {FL_H1-FL_H0}", f"v_lshlrev_b32 v4, 7, v{a}"]
def faaddr(a,b):
    return [f"s_mul_i32 s31, s22, 3", f"v_and_b32 v{a}, 1, v0", f"v_lshl_add_u32 v{a}, v{a}, 1, s31", f"v_lshrrev_b32 v{a}, 3, v{a}",
            f"v_bfe_u32 v{b}, v0, 1, 1", f"v_mul_u32_u24 v{b}, 24, v{b}", f"v_add_lshl_u32 v{a}, v{a}, v{b}, 7"]
def claddr(a):
    return [f"v_and_b32 v{a}, 15, v0", "s_lshl_b32 s52, s3, 4", f"v_add_lshl_u32 v{a}, v{a}, s52, 7"]
def fdaddr():
    return ["v_and_b32 v178, 3, v0","v_lshlrev_b32 v178, 8, v178"]
def g1_addr(a,b):
    return [f"v_lshrrev_b32 v{a}, 3, v0", f"v_bfe_u32 v{b}, v0, 1, 2", f"v_and_b32 v5, 3, v{a}", f"v_xor_b32 v{b}, v{b}, v5",
            f"v_lshlrev_b32 v5, 7, v{a}", f"v_lshl_add_u32 v5, v{b}, 5, v5", f"v_and_b32 v{b}, 1, v0", f"v_lshl_add_u32 v5, v{b}, 4, v5",
            "v_xor_b32 v6, 32, v5"]

def conv(k,P):
    ACC=16; RING=48; QR=176; T=192; FD=12
    GB=4*4160
    k(f"""
    v_cmp_eq_u32 vcc, 0, v0
    v_mov_b32 v11, {OOB}
    v_and_b32 v0, 63, v0
    v_cndmask_b32 v11, v11, 0, vcc
    v_and_b32 v6, 15, v0
    v_lshrrev_b32 v7, 4, v0
    v_mov_b32 v8, 0
    v_mov_b32 v9, 0
    v_lshlrev_b32 v10, 3, v0
    v_add_u32 v10, s46, v10
    ds_write_b64 v10, v[8:9] offset:{GB}
    s_mov_b64 exec, 15
    ds_write_b64 v10, v[8:9]
    s_mov_b64 exec, -1
    v_add_u32 v1, 1, v6
    v_and_b32 v1, 3, v1
    v_sub_u32 v2, v6, v1
    v_lshlrev_b32 v8, 3, v7
    v_sub_u32 v2, v2, v8
    v_add_u32 v2, 25, v2
    v_lshlrev_b32 v2, 1, v2
    v_mul_u32_u24 v1, 4160, v1
    v_add3_u32 v1, v1, v2, s46
    v_sub_u32 v16, v6, v8
    v_add_u32 v16, 25, v16
    v_lshlrev_b32 v16, 1, v16
    v_add_u32 v16, s46, v16
    v_lshlrev_b32 v2, 5, v6
    v_lshl_add_u32 v4, v7, 3, v2
    v_lshlrev_b32 v5, 1, v4
    v_lshl_add_u32 v2, v7, 4, v2
    s_add_u32 s36, s46, {GB+32}
    v_add_u32 v2, s36, v2
    s_and_b32 s37, s35, 1
    s_lshl_b32 s37, s37, 4
    s_lshr_b32 s47, s47, s37
    s_and_b32 s47, s47, 0xffff
    v_sub_u32 v8, v8, v6
    v_subrev_u32 v8, 9, v8
    v_and_b32 v9, 1, v8
    v_lshlrev_b32 v9, 4, v9
    v_lshlrev_b32 v9, v9, s47
    v_ashrrev_i32 v8, 1, v8
    v_mov_b32 v3, s60
    s_lshl_b32 s34, s2, 7
    s_add_u32 s33, s34, {FL_F0}
    s_waitcnt vmcnt({0 if FPOST else 4*(4-FEARLY)})
    s_barrier
    buffer_store_dword v3, v11, {WS}, s33 offen sc1
    """)
    P.stamp(3); P.stamp(1,6)
    if FPOST:
        for c in range(FEARLY,4): fdma_(k,c)
    P.stamp(2,6)
    for m in range(4):
        k(f"v_cmp_eq_u32 vcc, {m}, v8\ns_nop 1\nv_cndmask_b32 v{FD+m}, 0, v9, vcc")
    k(f"""
    v_and_b32 v8, 1, v7
    v_lshlrev_b32 v8, 2, v8
    v_lshrrev_b32 v9, 2, v6
    v_add_u32 v8, v8, v9
    v_mul_u32_u24 v10, 81920, v8
    v_and_b32 v8, 3, v6
    v_lshl_add_u32 v10, v8, 5, v10
    v_lshrrev_b32 v8, 1, v7
    v_lshl_add_u32 v10, v8, 4, v10
    s_lshl_b32 s40, s35, 7
    s_add_u32 s40, s40, {WS_HB}
    s_add_u32 s41, s40, {8*81920}
    s_add_u32 s42, s40, {16*81920}
    s_add_u32 s43, s40, {24*81920}
    s_and_b32 s32, s2, 0xf0
    v_cmp_gt_u32 vcc, 16, v0
    v_mov_b32 v17, s32
    v_mov_b32 v8, 192
    v_cndmask_b32 v17, v8, v17, vcc
    v_add_u32 v17, v17, v0
    v_lshlrev_b32 v17, 7, v17
    s_mov_b32 s32, {FL_F0}
    s_lshl_b32 s36, s35, 12
    s_add_u32 s37, s36, {WS_QT}
    s_lshl_b32 s44, s3, 12
    s_add_u32 s45, s44, {WS_A}
    s_add_u32 s48, s34, {FL_H0}
    s_add_u32 s49, s34, {FL_H1}
    v_lshlrev_b32 v3, 4, v0
    """)
    g1_pre(k)
    vm = Cnt(k,"vmcnt",63); lg = Cnt(k,"lgkmcnt",15)
    loc = {}
    for p in range(4):
        loc[("F",p)] = ("a", 32*p); loc[("G",p)] = ("a", 128+32*p)
    for p in range(4,8):
        loc[("G",p)] = ("v", RING); loc[("F",p)] = ("v", RING+32)
    loc[("F",7)] = ("a", 96)
    def reg(kind, blk, fr, lo=0, n=4):
        f,b = loc[(kind,blk)]
        return f"{f}[{b+4*fr+lo}:{b+4*fr+lo+n-1}]"
    def reads(kind, blk):
        o=[]
        if kind=="G":
            for fr in (range(7,-1,-1)):
                o.append(("i",lg,f"ds_read_b128 {reg('G',blk,fr)}, v2 offset:{64*(8*blk+fr)}", ("G",blk,fr)))
        else:
            for fr in range(8):
                u=8*blk+fr
                if u==0: o.append(("i",lg,f"ds_read_b128 {reg('F',0,0)}, v16", ("F",0,0)))
                else:
                    o.append(("i",lg,f"ds_read_b64 {reg('F',blk,fr,0,2)}, v1 offset:{64*u}", None))
                    o.append(("i",lg,f"ds_read_b64 {reg('F',blk,fr,2,2)}, v1 offset:{64*u+8}", ("F",blk,fr)))
        return o
    clk=Clk()
    S=Stream(k,clk); V=Stream(k,clk); L=Stream(k,clk)
    NEWC=E_("NEWC",0); FRD=E_("FRD",0)
    cd,ca=(172,171) if NEWC else (192,3)
    clr=[f"s_mul_i32 s54, s35, 10240", f"v_mov_b32 v{cd}, -1", f"s_add_u32 s54, s54, {WS_HH}", f"v_mov_b32 v{cd+1}, -1",f"v_mov_b32 v{cd+2}, -1",f"v_mov_b32 v{cd+3}, -1"]
    clr0=len(clr)
    for i in range(10):
        clr.append(("i",vm,f"buffer_store_dwordx4 v[{cd}:{cd+3}], v{ca}, {WS}, s54 offen offset:{1024*(i&3)} sc1","CLR"))
        if (i&3)==3: clr.append(("0","s_add_u32 s54, s54, 4096"))
    CLRP=E_("CLRP",0)
    wl=lambda a,b: [("i",vm,wload(n),("W",n)) for n in range(a,b)]
    def frd():
        for p in range(5): S.add(reads("F",p))
        S.flush()
    if NEWC:
        S.add(faaddr(170,171)+([f"s_mov_b32 s54, {FL_CL}"] if JCL else clr[:clr0]+["v_mov_b32 v171, v3"])+["s_mov_b32 s55, s30"]); S.flush()
        P.stamp(3,6)
        if FRD==0:
            k("s_waitcnt vmcnt(0) lgkmcnt(0)"); P.stamp(4,6); frd(); P.stamp(5,6)
        poll(k,17,"s32",18); vm.drained()
    else:
        S.add(faaddr(18,19)); S.flush()
        if CLRP==0:
            S.add(clr); S.flush(); P.stamp(3,6); k(f"s_waitcnt vmcnt({11-FPOST}) lgkmcnt(0)")
        else: k(f"s_waitcnt vmcnt({1-FPOST}) lgkmcnt(0)")
        P.stamp(4,6)
        frd(); P.stamp(5,6)
        poll(k,18,"s30",19)
        P.stamp(7,5); P.stamp(6,6)
        S.add(wl(0,28)); S.flush(); P.stamp(7,6)
        if CLRP==1: S.add(clr); S.flush()
        poll(k,17,"s32",18); vm.drained()
    P.stamp(4); P.stamp(8,6)
    def gd(i): k(f"buffer_load_dwordx4 v3, {WS}, s36 offen offset:{1024*i} sc1 lds"); vm.issue(f"P{i}")
    def ql(t): return ("i",vm,f"buffer_load_dwordx2 v[{QR+2*t}:{QR+2*t+1}], v4, {WS}, s37 offen offset:{512*t} sc1",f"Q{t}")
    k(f"s_add_u32 m0, s46, {GB+512}\ns_nop 0"); gd(0); gd(1)
    k("s_mov_b32 m0, s44\ns_nop 0")
    for i in range(4): k(f"buffer_load_dwordx4 v3, {WS}, s45 offen offset:{1024*i} sc1 lds"); vm.issue("AB")
    S.add([ql(t) for t in range(2)]); S.flush()
    k(f"s_add_u32 m0, s46, {GB+512}\ns_nop 0"); gd(2); gd(3)
    S.add([ql(t) for t in range(2,8)]); S.flush()
    if NEWC and FRD==1:
        k("s_waitcnt lgkmcnt(0)"); frd()
    k("v_mov_b32 v3, s60\ns_waitcnt lgkmcnt(0)"); lg.drained()
    def rdab(t):
        A=T+8*(t&1)
        return [("i",lg,f"ds_read_b128 v[{A}:{A+3}], v5 offset:{1024*t}",None),("i",lg,f"ds_read_b128 v[{A+4}:{A+7}], v5 offset:{8192+1024*t}",("ab",t))]
    def epi(t):
        q=QR+2*t; A=T+8*(t&1); B=A+4; Y=ACC+4*t; C=T+4+2*(t&1)
        o=[("w",vm,f"Q{t}"),("w",lg,("ab",t))]
        for h in range(2):
            o+=[f"v_lshlrev_b32 v8, 16, v{q+h}", f"v_and_b32 v9, s38, v{q+h}",
                f"v_pk_fma_f32 v[{A+2*h}:{A+2*h+1}], v[8:9], v[{A+2*h}:{A+2*h+1}], v[{B+2*h}:{B+2*h+1}]",
                f"v_pk_fma_f32 v[{A+2*h}:{A+2*h+1}], v[{A+2*h}:{A+2*h+1}], v[{Y+2*h}:{Y+2*h+1}], v[8:9]"]
        o+=[f"v_cvt_pk_bf16_f32 v{C}, v{A}, v{A+1}", f"v_cvt_pk_bf16_f32 v{C+1}, v{A+2}, v{A+3}"]
        return o
    def pst(t,sp):
        C=T+4
        return sp+[f"v_permlane16_swap_b32 v{C}, v{C+2}", f"v_permlane16_swap_b32 v{C+1}, v{C+3}",
                ("i",vm,f"buffer_store_dwordx4 v[{C}:{C+3}], v10, {WS}, s{40+t//2} offen sc1",f"H{t}")]
    blocks = [(0,0),(0,1),(1,0),(0,2),(1,1),(2,0),(0,3),(1,2),(2,1),(3,0),
              (1,3),(2,2),(3,1),(2,3),(3,2),(3,3),
              (3,4),(2,4),(1,4),(0,4),(4,3),(4,2),(4,1),(4,0),
              (2,5),(1,5),(0,5),(5,2),(5,1),(5,0),(1,6),(0,6),(6,1),(6,0),(0,7),(7,0)]
    TB=[0]
    for (p,q) in blocks: TB.append(TB[-1]+8+(p==0))
    at=lambda b,d=0: ("t",TB[b]+d)
    L.add(reads("G",1)+[("w",vm,"P1")]+reads("G",2)+reads("G",3)+[at(8),("w",vm,"P2")]+reads("G",4)
          +[at(17)]+reads("F",7)+[at(20)]+reads("G",5)+[at(24)]+reads("F",5)+[at(27),("w",vm,"P3")]+reads("G",6)+[at(30)]+reads("F",6)+[at(32)]+reads("G",7))
    done=set()
    def need(x):
        assert x in done, (x, clk.t, TB[14], len(S.q), S.q[:3])
    if NEWC:
        prb=lambda a,d,t: ("i",vm,f"buffer_load_dword v{d}, v{a}, {WS}, s55 offen sc1",t)
        W1=E_("W1",24)
        V.add([prb(170,169,"A1")]+([] if (JCL or E_('G1C',0)) else clr[clr0:])+[at(E_("A1B",0)),("w",vm,"A1"),"v_cmp_ne_u32 vcc, s60, v169","s_cmp_lg_u64 vcc, 0",f"s_cselect_b32 s62, {OOB}, 0",
              "v_xor_b32 v6, s62, v6","v_xor_b32 v7, s62, v7"]+wl(0,W1)+[at(14),("z",lambda: need("e3")),"v_mov_b32 v182, v170",at(E_("A2B",14)),prb(182,183,"A2")]+wl(W1,28)
              +[at(21),("w",vm,"A2"),"v_cmp_ne_u32 vcc, s60, v183","s_cmp_lg_u64 vcc, 0",f"s_cselect_b32 s63, {OOB}, 0","s_xor_b32 s52, s62, s63",
              "v_xor_b32 v6, s52, v6","v_xor_b32 v7, s52, v7"])
    V.add([at(21)]+wl(28,36)+[at(25)]+wl(36,44)+[at(28)]+wl(44,52)+[at(31)]+wl(52,60))
    S.add([at(3),("w",vm,"AB"),"s_barrier"] + rdab(0)+rdab(1)+[None]*6+epi(0)+epi(1)+pst(0,[None,None]))
    S.add(rdab(2)+rdab(3)+[at(8)]+epi(2)+[at(10,3)]+epi(3)+[("z",lambda: done.add("e3"))]+pst(2,[None,None]))
    if JCL: S.add(claddr(179))
    S.add(h0addr(8,9)+fdaddr()+rdab(4)+[("i",vm,f"buffer_load_dword v177, v178, {WS}, s23 offen sc1","FDp")])
    S.add([at(E_("H0B",19)),("w",vm,"H2"),"s_barrier",("i",vm,f"buffer_store_dword v3, v11, {WS}, s48 offen sc1",None)])
    S.add([at(24,3)]+epi(4)+rdab(5)+[at(30,3)]+epi(5)+pst(4,[None,None])+rdab(6)+rdab(7)+g1_addr(180,181)[:-1])
    if JCL: S.add([at(E_("CLP",31)),("i",vm,f"buffer_load_dword v184, v179, {WS}, s54 offen sc1","CLp")])
    S.add([at(E_("H0P",33)),("i",vm,f"buffer_load_dword v176, v4, {WS}, s30 offen sc1","H0p"),at(34,3)]+epi(6))
    P.stamp(9,6)
    vm.wait("P0")
    P.stamp(5); P.stamp(10,6)
    if E_("CRS",1): clk.tl=0.0; clk.tv=0.0
    S2=Stream(k,clk); S2.add(reads("G",0)); S2.flush()
    seen=set()
    CST=[int(x) for x in os.environ.get("CST","0,2,4,7,10,13,16,20,24,28,32,35").split(",")]
    for bi,(p,q) in enumerate(blocks):
        if bi in CST: P.stamp(1+CST.index(bi),2)
        assert clk.t==TB[bi]
        Y=ACC+4*(p+q)
        for r in range(8):
            for tag in (("F",p,r),("G",q,7-r)):
                L.until(lg,tag); lg.wait(tag)
            c = f"v[{Y}:{Y+3}]" if (p+q) in seen else "0"
            seen.add(p+q)
            k(f"v_mfma_f32_16x16x32_bf16 v[{Y}:{Y+3}], {reg('F',p,r)}, {reg('G',q,7-r)}, {c}")
            tick(clk,[V,L,S],first=S)
            if r==0 and p==0:
                k(f"v_mfma_f32_16x16x32_bf16 v[{Y}:{Y+3}], v[{FD}:{FD+3}], {reg('G',q,7)}, v[{Y}:{Y+3}]")
                tick(clk,[V,L,S],first=S)
    assert not L.q
    print("conv end: left S",len(S.q),"V",len(V.q))
    S.flush()
    k("s_nop 7")
    S.add(epi(7)+pst(6,["s_nop 1"])); S.flush()
    nleft=sum(1 for x in V.q if x[0]=='i'); V.flush()
    if NEWC:
        k(f"""s_or_b32 s52, s62, s63
        s_cbranch_scc0 FZ_WOK
        v_xor_b32 v6, s63, v6
        v_xor_b32 v7, s63, v7
        s_cmp_eq_u32 s63, 0
        s_cbranch_scc1 FZ_W28""")
        poll(k,182,"s55",183)
        for n in range(28,60): k(wload(n))
        k("FZ_W28:")
        for n in range(28): k(wload(n))
        k("FZ_WOK:")
    k(g1_addr(180,181)[-1])
    P.stamp(6)
    if STOP<=2:
        vm.wait("H6")
        k(f"s_barrier\nbuffer_store_dword v3, v11, {WS}, s49 offen sc1\ns_branch FZ_FIN")
        return
    global NLEFT
    NLEFT=nleft
    k("s_barrier")
    vm.wait("FDp"); check_or_poll(k,178,"s23",177)
    if JCL: vm.wait("CLp"); check_or_poll(k,179,"s54",184)
    vm.wait("H0p"); check_or_poll(k,4,"s30",176)
    k("s_branch FZ_G1")

def join(k,P):
    if STOP<=2: return
    g1_pre(k)
    S=Stream(k)
    S.add(faaddr(4,5)); S.flush()
    poll(k,4,"s30",5,sleep=E_("JSA",0))
    for n in range(60): k(wload(n))
    S.add(fdaddr()); S.flush()
    poll(k,178,"s23",177,sleep=E_("JSD",0))
    if JCL:
        S.add(claddr(179)+[f"s_mov_b32 s54, {FL_CL}"]); S.flush()
        poll(k,179,"s54",177,sleep=E_("JSD",0))
    S.add(h0addr(8,9)+g1_addr(8,9)+[f"v_mov_b32 v11, {OOB}","s_mov_b32 s49, 0"]); S.flush()
    poll(k,4,"s30",176,sleep=E_("JSL",2))
    k("FZ_G1:")
    import fz3
    fz3.g1(k,P,NLEFT)
```

```python
NAME = "sequential_preLN__ssm_conv_h3__glu_gated_bilinear__prompt"
HEADER = open("cdna_kernels/" + NAME + ".s.ref").read().split("; Override launch")[0]

class Kern:
    def __init__(self, name, grid, block, lds, vgpr=256, sgpr=102, agpr=0, wgy=False):
        self.name, self.grid, self.block, self.lds = name, grid, block, lds
        self.vgpr, self.sgpr, self.agpr = vgpr, sgpr, agpr
        self.lines = []
        self.uid = 0
        self.wgy = wgy
    def e(self, s):
        for l in s.strip("\n").split("\n"):
            l = l.strip()
            if l: self.lines.append(("" if l.endswith(":") else "    ") + l)
    __call__ = e
    def label(self, base):
        self.uid += 1
        return f"L_{self.name[:6]}_{base}_{self.uid}"
    def srd(self, d, base, nbytes):
        if d != base:
            self.e(f"s_mov_b32 s{d}, s{base}\ns_mov_b32 s{d+1}, s{base+1}")
        self.e(f"s_mov_b32 s{d+2}, {nbytes}\ns_mov_b32 s{d+3}, 0x00020000")
    def text(self):
        o = [f".globl {self.name}", ".p2align 8", f".type {self.name},@function", f"{self.name}:"] + self.lines
        return "\n".join(o) + "\n"
    def desc(self):
        acc = (self.vgpr + 3) // 4 * 4
        tot = acc + self.agpr if self.agpr else self.vgpr
        o = [".p2align 6", f".amdhsa_kernel {self.name}",
             f"  .amdhsa_next_free_vgpr {tot}", f"  .amdhsa_next_free_sgpr {self.sgpr}",
             f"  .amdhsa_accum_offset {acc}", "  .amdhsa_group_segment_fixed_size 0",
             "  .amdhsa_kernarg_size 104", "  .amdhsa_user_sgpr_count 2",
             "  .amdhsa_user_sgpr_kernarg_segment_ptr 1", "  .amdhsa_system_sgpr_workgroup_id_x 1"]
        if self.wgy: o.append("  .amdhsa_system_sgpr_workgroup_id_y 1")
        o += ["  .amdhsa_float_denorm_mode_32 3", "  .amdhsa_float_denorm_mode_16_64 3", ".end_amdhsa_kernel"]
        return "\n".join(o) + "\n"

def build_file(kerns, launches=None):
    launches = launches or kerns
    o = HEADER
    for k in launches:
        o += f"; @launch kernel={k.name} grid=({k.grid[0]},{k.grid[1]},{k.grid[2]}) block=({k.block},1,1) lds={k.lds}\n"
    o += '.amdgcn_target "amdgcn-amd-amdhsa--gfx950"\n.text\n'
    for k in kerns: o += k.text()
    o += '.section .rodata,"a"\n'
    for k in kerns: o += k.desc()
    return o

def vr(a, n=1):
    return f"v{a}" if n == 1 else f"v[{a}:{a+n-1}]"
def sr(a, n=1):
    return f"s{a}" if n == 1 else f"s[{a}:{a+n-1}]"
def ar(a, n=1):
    return f"a{a}" if n == 1 else f"a[{a}:{a+n-1}]"

import os
PROF = int(os.environ.get("PROF","0"))
WS_PROF = 0x1800000
DG = int(os.environ.get("DG","0")); DGW = int(os.environ.get("DGW","5")); DGN = int(os.environ.get("DGN","1")); DGC = int(os.environ.get("DGC","0")); DG0 = int(os.environ.get("DG0","0"))
class Prof:
    def __init__(self, k, kid, wpw):
        self.k, self.kid, self.wpw = k, kid, wpw
        if PROF: k.sgpr = 102
    def start(self):
        if not PROF: return
        self.k("s_memrealtime s[64:65]\ns_memtime s[68:69]\ns_load_dwordx2 s[96:97], s[0:1], 96\nv_lshrrev_b32 v1, 6, v0\ns_nop 1\nv_readfirstlane_b32 s98, v1\ns_mov_b32 s99, s2")
        for i in range(1,14): self.k(f"s_mov_b32 s{68+2*i}, 0")
    def stamp(self, i, grp=1):
        if PROF!=grp: return
        self.k(f"{'s_memrealtime' if DG and not DGC else 's_memtime'} s[{68+2*i}:{69+2*i}]")
    def end(self):
        if not PROF: return
        k=self.k
        if DG:
            k(f"""s_waitcnt vmcnt(0)
            {'s_memtime' if DGC else 's_memrealtime'} s[94:95]
            s_memrealtime s[96:97]
            s_waitcnt lgkmcnt(0)
            s_sub_u32 s98, s99, {DGW}
            s_cmp_ge_u32 s98, {DGN}
            s_cbranch_scc1 DG_OUT
            s_sub_u32 s98, s{68+2*DG}, s{68+2*DG0 if (DGC or DG0) else 64}
            s_min_u32 s98, s98, {100000 if DGC else 6000}
            {'s_lshr_b32 s98, s98, 1' if DGC else 's_lshl_b32 s98, s98, 4'}
            DG_LP:
            s_sleep 8
            s_memrealtime s[66:67]
            s_waitcnt lgkmcnt(0)
            s_sub_u32 s66, s66, s96
            s_cmp_lt_u32 s66, s98
            s_cbranch_scc1 DG_LP
            DG_OUT:""")
            return
        k(f"""s_waitcnt vmcnt(0)
        s_memrealtime s[66:67]
        s_memtime s[94:95]
        s_waitcnt lgkmcnt(0)
        s_mul_i32 s99, s99, {self.wpw}
        s_add_u32 s99, s99, s98
        s_lshl_b32 s99, s99, 6
        s_add_u32 s99, s99, {WS_PROF + self.kid*0x40000}
        s_add_u32 s96, s96, s99
        s_addc_u32 s97, s97, 0
        s_mov_b32 s98, 64
        s_mov_b32 s99, 0x00020000
        s_mov_b64 exec, 1
        v_mov_b32 v0, 0
        v_mov_b32 v2, s64
        v_mov_b32 v3, s66
        buffer_store_dwordx2 v[2:3], v0, s[96:99], 0 offen""")
        for i in range(14):
            k(f"v_mov_b32 v2, s{68+2*i}\nbuffer_store_dword v2, v0, s[96:99], 0 offen offset:{8+4*i}\ns_nop 0")
        k("s_waitcnt vmcnt(0)")
```

```python
NAME = "sequential_preLN__ssm_conv_h3__glu_gated_bilinear__prompt"
HEADER = open("cdna_kernels/" + NAME + ".s.ref").read().split("; Override launch")[0]

class Kern:
    def __init__(self, name, grid, block, lds, vgpr=256, sgpr=102, agpr=0, wgy=False):
        self.name, self.grid, self.block, self.lds = name, grid, block, lds
        self.vgpr, self.sgpr, self.agpr = vgpr, sgpr, agpr
        self.lines = []
        self.uid = 0
        self.wgy = wgy
    def e(self, s):
        for l in s.strip("\n").split("\n"):
            l = l.strip()
            if l: self.lines.append(("" if l.endswith(":") else "    ") + l)
    __call__ = e
    def label(self, base):
        self.uid += 1
        return f"L_{self.name[:6]}_{base}_{self.uid}"
    def srd(self, d, base, nbytes):
        if d != base:
            self.e(f"s_mov_b32 s{d}, s{base}\ns_mov_b32 s{d+1}, s{base+1}")
        self.e(f"s_mov_b32 s{d+2}, {nbytes}\ns_mov_b32 s{d+3}, 0x00020000")
    def text(self):
        o = [f".globl {self.name}", ".p2align 8", f".type {self.name},@function", f"{self.name}:"] + self.lines
        return "\n".join(o) + "\n"
    def desc(self):
        acc = (self.vgpr + 3) // 4 * 4
        tot = acc + self.agpr if self.agpr else self.vgpr
        o = [".p2align 6", f".amdhsa_kernel {self.name}",
             f"  .amdhsa_next_free_vgpr {tot}", f"  .amdhsa_next_free_sgpr {self.sgpr}",
             f"  .amdhsa_accum_offset {acc}", "  .amdhsa_group_segment_fixed_size 0",
             "  .amdhsa_kernarg_size 104", "  .amdhsa_user_sgpr_count 2",
             "  .amdhsa_user_sgpr_kernarg_segment_ptr 1", "  .amdhsa_system_sgpr_workgroup_id_x 1"]
        if self.wgy: o.append("  .amdhsa_system_sgpr_workgroup_id_y 1")
        o += ["  .amdhsa_float_denorm_mode_32 3", "  .amdhsa_float_denorm_mode_16_64 3", ".end_amdhsa_kernel"]
        return "\n".join(o) + "\n"

def build_file(kerns, launches=None):
    launches = launches or kerns
    o = HEADER
    for k in launches:
        o += f"; @launch kernel={k.name} grid=({k.grid[0]},{k.grid[1]},{k.grid[2]}) block=({k.block},1,1) lds={k.lds}\n"
    o += '.amdgcn_target "amdgcn-amd-amdhsa--gfx950"\n.text\n'
    for k in kerns: o += k.text()
    o += '.section .rodata,"a"\n'
    for k in kerns: o += k.desc()
    return o

def vr(a, n=1):
    return f"v{a}" if n == 1 else f"v[{a}:{a+n-1}]"
def sr(a, n=1):
    return f"s{a}" if n == 1 else f"s[{a}:{a+n-1}]"
def ar(a, n=1):
    return f"a{a}" if n == 1 else f"a[{a}:{a+n-1}]"

import os
PROF = int(os.environ.get("PROF","0"))
WS_PROF = 0x1800000
DG = int(os.environ.get("DG","0")); DGW = int(os.environ.get("DGW","5")); DGN = int(os.environ.get("DGN","1")); DGC = int(os.environ.get("DGC","0")); DG0 = int(os.environ.get("DG0","0"))
class Prof:
    def __init__(self, k, kid, wpw):
        self.k, self.kid, self.wpw = k, kid, wpw
        if PROF: k.sgpr = 102
    def start(self):
        if not PROF: return
        self.k("s_memrealtime s[64:65]\ns_memtime s[68:69]\ns_load_dwordx2 s[96:97], s[0:1], 96\nv_lshrrev_b32 v1, 6, v0\ns_nop 1\nv_readfirstlane_b32 s98, v1\ns_mov_b32 s99, s2")
        for i in range(1,14): self.k(f"s_mov_b32 s{68+2*i}, 0")
    def stamp(self, i, grp=1):
        if PROF!=grp: return
        self.k(f"{'s_memrealtime' if DG and not DGC else 's_memtime'} s[{68+2*i}:{69+2*i}]")
    def end(self):
        if not PROF: return
        k=self.k
        DGB=int(os.environ.get("DGB","0")); STB=os.environ.get("STB","sc1").replace("_"," ")
        if DGB:
            k(f"""s_waitcnt vmcnt(0) lgkmcnt(0)
            s_mov_b64 exec, -1
            s_lshl_b32 s90, s99, 2
            s_add_u32 s90, s90, s98
            s_mul_i32 s90, s90, 8192
            s_add_u32 s90, s90, 0x4000000
            s_mov_b32 s88, s96
            s_mov_b32 s89, s97
            s_add_u32 s88, s88, s90
            s_addc_u32 s89, s89, 0
            s_mov_b32 s90, 8192
            s_mov_b32 s91, 0x00020000
            s_mov_b32 s93, 4096
            v_mbcnt_lo_u32_b32 v0, -1, 0
            v_mbcnt_hi_u32_b32 v0, -1, v0
            v_lshlrev_b32 v0, 4, v0
            s_memrealtime s[70:71]""")
            for ps in range(2):
                if ps==0 and DGB==3:
                    for i in range(6): k(f"buffer_load_dwordx4 v[{8+4*i}:{11+4*i}], v0, s[88:91], {'s93' if i>=4 else '0'} offen offset:{1024*(i&3)} sc1")
                else:
                    for i in range(6): k(f"buffer_store_dwordx4 v[4:7], v0, s[88:91], {'s93' if i>=4 else '0'} offen offset:{1024*(i&3)} {STB}")
                k(f"s_waitcnt vmcnt(0)\ns_memrealtime s[{72+2*ps}:{73+2*ps}]\ns_waitcnt lgkmcnt(0)")
        if DG:
            k(f"""s_waitcnt vmcnt(0)
            {'s_memtime' if DGC else 's_memrealtime'} s[94:95]
            s_memrealtime s[96:97]
            s_waitcnt lgkmcnt(0)
            s_sub_u32 s98, s99, {DGW}
            s_cmp_ge_u32 s98, {DGN}
            s_cbranch_scc1 DG_OUT
            s_sub_u32 s98, s{68+2*DG}, s{68+2*DG0 if (DGC or DG0) else 64}
            s_min_u32 s98, s98, {100000 if DGC else 6000}
            {'s_lshr_b32 s98, s98, 1' if DGC else 's_lshl_b32 s98, s98, 4'}
            DG_LP:
            s_sleep 8
            s_memrealtime s[66:67]
            s_waitcnt lgkmcnt(0)
            s_sub_u32 s66, s66, s96
            s_cmp_lt_u32 s66, s98
            s_cbranch_scc1 DG_LP
            DG_OUT:""")
            return
        k(f"""s_waitcnt vmcnt(0)
        s_memrealtime s[66:67]
        s_memtime s[94:95]
        s_waitcnt lgkmcnt(0)
        s_mul_i32 s99, s99, {self.wpw}
        s_add_u32 s99, s99, s98
        s_lshl_b32 s99, s99, 6
        s_add_u32 s99, s99, {WS_PROF + self.kid*0x40000}
        s_add_u32 s96, s96, s99
        s_addc_u32 s97, s97, 0
        s_mov_b32 s98, 64
        s_mov_b32 s99, 0x00020000
        s_mov_b64 exec, 1
        v_mov_b32 v0, 0
        v_mov_b32 v2, s64
        v_mov_b32 v3, s66
        buffer_store_dwordx2 v[2:3], v0, s[96:99], 0 offen""")
        for i in range(14):
            k(f"v_mov_b32 v2, s{68+2*i}\nbuffer_store_dword v2, v0, s[96:99], 0 offen offset:{8+4*i}\ns_nop 0")
        k("s_waitcnt vmcnt(0)")
```

```python
from fzc import *
from fz2 import wreg, rr, wdreg, wdload, OOB, E_
MF="v_mfma_f32_16x16x32_bf16"
SA=96; SB=100; SX=104; ONES=108; RING=16
BLK=49152

G1C=int(os.environ.get("G1C","0")); FL_Q0=WS_FL+0x20000
G1CSET=f'''s_lshl_b32 s21, s20, 10
    s_lshl_b32 s22, s22, 4
    s_add_u32 s21, s21, s22
    s_add_u32 s21, s21, {FL_Q0}
    s_lshl_b32 s22, s32, 10
    s_add_u32 s22, s22, {FL_Q0}
    s_add_u32 s20, s52, {2*BLK}
    s_add_u32 s48, s62, 32768
    v_mov_b32 v72, -1
    v_mov_b32 v73, -1
    v_mov_b32 v74, -1
    v_mov_b32 v75, -1''' if G1C else ""
def g1(k,P,nleft):
    clk=Clk()
    vm=Cnt(k,"vmcnt",63); lg=Cnt(k,"lgkmcnt",15); S=Stream(k,clk); V=Stream(k,clk); D=Stream(k,clk); L=Stream(k,clk)
    vm.issue("H6")
    for n in range(nleft): vm.issue()
    def dma(slab):
        o=[]
        for j in range(5):
            o+=["s_mov_b32 m0, s50",("0","s_add_u32 s50, s50, 16384")]
            for i in range(4):
                o.append(("i",vm,f"buffer_load_dwordx4 v{5+(i&1)}, {WS}, s51 offen offset:{1024*i} sc1 lds",("S",slab,j)))
            o.append(("0",f"s_add_u32 s51, s51, {16384 if j<4 else 16384+15*81920}"))
        return o
    P.stamp(7)
    S.add(dma(0)); S.flush()
    k(f"""
    s_load_dwordx2 s[44:45], s[0:1], 80
    v_mov_b32 v13, v4
    v_mov_b32 v12, s60
    v_lshrrev_b32 v16, 4, v0
    v_bfe_u32 v17, v0, 2, 2
    v_and_b32 v18, 3, v0
    v_and_b32 v19, 15, v0
    v_lshl_add_u32 v1, v16, 3, v17
    v_lshlrev_b32 v1, 7, v1
    v_and_b32 v20, 1, v16
    v_xor_b32 v20, v20, v17
    v_lshl_add_u32 v1, v20, 5, v1
    v_lshl_add_u32 v1, v18, 3, v1
    v_xor_b32 v2, 32, v1
    v_xor_b32 v3, 64, v1
    v_xor_b32 v4, 0x60, v1
    s_and_b32 s32, s21, 3
    s_lshl_b32 s33, s32, 5
    v_xor_b32 v7, s33, v1
    s_lshl_b32 s33, s3, 12
    v_add_u32 v7, s33, v7
    v_lshlrev_b32 v14, 4, v0
    v_cmp_gt_u32 vcc, 48, v0
    v_mov_b32 v21, {OOB}
    s_lshr_b32 s33, s21, 2
    v_cmp_eq_u32 s[34:35], v16, v17
    v_cndmask_b32 v8, v21, v14, vcc
    v_cmp_eq_u32 vcc, s33, v17
    v_xor_b32 v20, s33, v16
    v_cmp_gt_u32 s[36:37], 2, v20
    s_lshl_b32 s32, s32, 9
    s_lshl_b32 s33, s3, 3
    s_add_u32 s32, s32, s33
    v_lshlrev_b32 v15, 5, v19
    v_add_u32 v15, s32, v15
    v_add_u32 v20, 4, v15
    s_and_b64 s[36:37], s[36:37], vcc
    v_cndmask_b32 v15, v15, v20, s[34:35]
    v_cndmask_b32 v15, v21, v15, s[36:37]
    v_cmp_eq_u32 s[36:37], 1, v18
    v_cmp_eq_u32 s[40:41], 2, v18
    v_cmp_eq_u32 s[42:43], 3, v18
    v_mov_b32 v{ONES}, 0x3f803f80
    v_mov_b32 v{ONES+1}, 0x3f803f80
    v_mov_b32 v{ONES+2}, 0x3f803f80
    v_mov_b32 v{ONES+3}, 0x3f803f80
    s_mov_b32 s38, 0xffff0000
    s_mul_i32 s52, s22, 768
    s_mul_i32 s32, s20, {4*BLK}
    s_add_u32 s52, s52, s32
    s_add_u32 s52, s52, {WS_HH}
    s_lshl_b32 s62, s20, 11
    s_add_u32 s62, s62, {WS_RS}
    s_and_b32 s32, s2, 7
    s_lshl_b32 s32, s32, 1
    s_bfe_u32 s33, s2, 0x10004
    s_add_u32 s32, s32, s33
    s_bfe_u32 s33, s2, 0x10003
    s_lshr_b32 s48, s2, 5
    s_lshl_b32 s54, s32, 2
    s_add_u32 s54, s54, s33
    s_mul_i32 s4, s54, {BLK}
    s_mul_i32 s5, s3, 12288
    s_add_u32 s4, s4, s5
    s_add_u32 s4, s4, {WS_HH}
    """)
    bo=[0,2,64,66]
    for s in range(4):
        for i in range(3):
            if s or i: k(f"s_add_u32 s{4+3*s+i}, s4, {bo[s]*BLK+4096*i}")
    k(f"""
    s_mul_i32 s16, s54, 20480
    s_mul_i32 s17, s48, 160
    s_add_u32 s16, s16, s17
    s_lshl_b32 s24, s54, 9
    s_add_u32 s24, s24, {WS_RS}
    """)
    for s in range(1,4): k(f"s_add_u32 s{16+s}, s16, {bo[s]*20480}\ns_add_u32 s{24+s}, s24, {bo[s]*512}")
    k(f"""
    s_lshr_b32 s28, s3, 1
    s_lshl_b32 s28, s28, 4
    s_add_u32 s28, s28, s32
    s_mul_i32 s28, s28, 81920
    s_mul_i32 s29, s48, 10240
    s_add_u32 s28, s28, s29
    s_and_b32 s29, s3, 1
    s_mul_i32 s29, s29, 5120
    s_add_u32 s28, s28, s29
    s_add_u32 s28, s28, {WS_HB}
    s_mul_i32 s29, s3, 5120
    v_add_u32 v10, s29, v14
    s_mov_b32 s63, s29
    s_add_u32 s23, s53, 46080
    s_add_u32 s29, s29, 40960
    s_lshl_b32 s39, s3, 8
    v_lshlrev_b32 v9, 4, v19
    v_lshl_add_u32 v9, v16, 11, v9
    v_add_u32 v9, s39, v9
    s_lshl_b32 s39, s3, 3
    v_lshl_add_u32 v20, v16, 5, s39
    s_lshl_b32 s39, s3, 2
    s_add_u32 s39, s39, 64
    v_mov_b32 v22, s39
    v_cmp_gt_u32 vcc, 32, v0
    s_lshl_b32 s39, s33, 5
    s_add_u32 s39, s39, 40960
    v_cndmask_b32 v20, v22, v20, vcc
    v_add_u32 v20, v20, v17
    v_lshlrev_b32 v20, 7, v20
    v_lshl_add_u32 v20, v18, 3, v20
    s_mov_b32 s46, {NB_ACT}
    s_mov_b32 s47, 0x00020000
    {G1CSET}
    s_waitcnt lgkmcnt(0)
    """)
    vm.wait("H6")
    k(f"s_barrier\nbuffer_store_dword v12, v11, {WS}, s49 offen sc1"); vm.issue()
    k("v_add_u32 v11, s39, v20")
    def xread(g):
        q,r=divmod(g,40); ks=r>>1; b=2*(q&1)+(g&1); slab=q>>1
        if r%8==0 and (q&1)==0:
            D.until(vm,("S",slab,r//8,"e")) if slab else None
            vm.wait(("S",slab,r//8)); k("s_barrier")
        if ks==(12 if slab else 16): k(f"v_add_u32 v{1+b}, 0x10000, v{1+b}")
        off = ks*4096 - (65536 if ks>=16 else 0) if slab==0 else 16384+ks*4096-(65536 if ks>=12 else 0)
        d=RING+4*(g%8)
        k(f"ds_read_b64_tr_b16 v[{d}:{d+1}], v{1+b} offset:{off}"); lg.issue()
        k(f"ds_read_b64_tr_b16 v[{d+2}:{d+3}], v{1+b} offset:{off+512}"); lg.issue(("X",g))
        clk.use("ds_read_b128")
        if r%8==0 and (q&1)==0:
            t=5*slab+r//8
            S.add([("i",lg,f"ds_read_b64_tr_b16 v[{SX}:{SX+1}], v7",None),("i",lg,f"ds_read_b64_tr_b16 v[{SX+2}:{SX+3}], v7 offset:512",("SX",t)),
                   "v_add_u32 v7, 0x4000, v7"])
    def smf(t):
        c=lambda r: "0" if t%5==0 else f"v[{r}:{r+3}]"
        return [("w",lg,("SX",t)), f"{MF} v[{SA}:{SA+3}], v[{ONES}:{ONES+3}], v[{SX}:{SX+3}], {c(SA)}",
                f"{MF} v[{SB}:{SB+3}], v[{SX}:{SX+3}], v[{SX}:{SX+3}], {c(SB)}"]
    def sfin(slab):
        return [f"v_cndmask_b32 v{SB}, v{SB}, v{SB+1}, s[36:37]", f"v_cndmask_b32 v{SB}, v{SB}, v{SB+2}, s[40:41]",
                f"v_cndmask_b32 v{SB}, v{SB}, v{SB+3}, s[42:43]", f"v_cndmask_b32 v{SB}, v{SA}, v{SB}, s[34:35]",
                ("i",vm,f"buffer_store_dword v{SB}, v15, {WS}, s62 offen sc1",None), ("0","s_add_u32 s62, s62, 32768")]
    def epi(q,nop=False):
        def one(c):
            return [f"v_pk_mul_f32 v[{c}:{c+1}], v[{c}:{c+1}], v[{c+4}:{c+5}]", f"v_pk_mul_f32 v[{c+2}:{c+3}], v[{c+2}:{c+3}], v[{c+6}:{c+7}]",
                f"v_permlane32_swap_b32 v{c+8}, v{c+10}", f"v_permlane32_swap_b32 v{c+9}, v{c+11}",
                f"v_cvt_pk_bf16_f32 v{c+4}, v{c}, v{c+1}", f"v_cvt_pk_bf16_f32 v{c+5}, v{c+2}, v{c+3}",
                f"v_pk_mul_f32 v[{c+8}:{c+9}], v[{c+8}:{c+9}], v[{c+10}:{c+11}]",
                f"v_cvt_pk_bf16_f32 v{c+6}, v{c+8}, v{c+9}",
                f"v_permlane16_swap_b32 v{c+4}, v{c+5}", f"v_permlane16_swap_b32 v{c+6}, v{c+7}",
                f"v_permlane32_swap_b32 v{c+4}, v{c+6}", f"v_permlane32_swap_b32 v{c+5}, v{c+7}"]
        c=72 if q&1 else 48
        o=[]
        for i,(x,y) in enumerate(zip(one(c),one(c+12))):
            if nop and i==10: o.append("s_nop 0")
            o+=[x,y]
        for h in range(2):
            d=c+12*h+4
            o+=[("i",vm,f"buffer_store_dwordx4 v[{d}:{d+3}], v8, {WS}, s52 offen sc1",("HS",q,h)), ("0",f"s_add_u32 s52, s52, {BLK*(61 if (q==1 and h==1) else 1)}")]
        return o
    bufn=[0,32,44,0]
    def hhl(s,j): return f"buffer_load_dwordx4 {rr(wreg(bufn[s]+j))}, v14, {WS}, s{4+3*s+(j>>2)} offen offset:{1024*(j&3)} sc1"
    def hhload(s,a=0,b=12): return [("i",vm,hhl(s,j),("HH",s,j)) for j in range(a,b)]
    RSR=[68,70,92,94]
    def rsl(s): return f"buffer_load_dwordx2 v[{RSR[s]}:{RSR[s]+1}], v13, {WS}, s{24+s} offen sc1"
    def rsload(s): return [("i",vm,rsl(s),("RS",s))]
    wd=lambda a,b: sum([wdload(vm,n,14) for n in range(a,b)],[])
    plan={i:[] for i in range(161)}
    for t in range(10):
        gb=80*(t//5)+8*(t%5)-5
        plan[max(gb,-2)+3]+=smf(t)
    plan[E_("H1P",16)]+=[("i",vm,f"buffer_load_dword v12, v13, {WS}, s31 offen sc1","H1p")]
    def h1chk():
        vm.wait("H1p"); check_or_poll(k,13,"s31",12); P.stamp(9)
    late=[ "v_and_b32 v12, 15, v0","v_lshrrev_b32 v13, 4, v0", "v_mul_u32_u24 v6, 1280, v12", "s_lshl_b32 s39, s3, 4",
           "v_lshl_add_u32 v5, v13, 6, v6", "v_add_u32 v5, s39, v5", "s_lshl_b32 s39, s3, 3", "s_add_u32 s39, s39, 128", "v_add_u32 v6, s39, v6",
           "v_cmp_gt_u32 vcc, 2, v13", "v_cmp_eq_u32 s[54:55], 2, v13", "v_lshlrev_b32 v13, 3, v13", "v_lshl_add_u32 v13, v12, 5, v13",
           f"v_mov_b32 v12, {OOB}", "v_cndmask_b32 v5, v12, v5, vcc", "v_cndmask_b32 v6, v12, v6, s[54:55]"]
    H1C=E_("H1C",42)
    at=lambda g: ("t",3*g)
    d1=dma(1)
    dd=[]
    for x in d1:
        dd.append(x)
        if isinstance(x,tuple) and x[0]=="0" and "s51" in x[1]:
            jj=sum(1 for y in dd if isinstance(y,tuple) and y[0]=="i")//4-1
            dd.append(("x0",jj))
    def mark(jj): return ("z",lambda: vm.tags.__setitem__(("S",1,jj,"e"),vm.n))
    D.add([at(H1C),("x",h1chk)]+[mark(x[1]) if isinstance(x,tuple) and x[0]=="x0" else x for x in dd]+late)
    plan[41]+=sfin(0)+epi(0)
    plan[81]+=epi(1)
    res=["s_mov_b32 m0, s29",("0","s_add_u32 s29, s29, 4096")]+[("i",vm,f"buffer_load_dwordx4 v14, {WS}, s28 offen offset:{1024*i} sc1 lds",None) for i in range(4)]
    res+=["s_mov_b32 m0, s29",("0","s_add_u32 s28, s28, 4096"),("i",vm,f"buffer_load_dwordx4 v14, {WS}, s28 offen sc1 lds","RES")]
    stg=[]
    for g in range(3):
        stg+=["s_mov_b32 m0, s63",("0","s_add_u32 s63, s63, 4096")]+[("i",vm,f"buffer_load_dwordx4 v14, {WS}, s23 offen offset:{1024*i} sc1 lds",None) for i in range(4)]
        stg+=["s_mov_b32 m0, s63",("0","s_add_u32 s23, s23, 4096"),("i",vm,f"buffer_load_dwordx4 v14, {WS}, s23 offen sc1 lds",("ST",g)),
              ("0","s_add_u32 s23, s23, 1024"),("0",f"s_add_u32 s63, s63, {[16384,36864,0][g]}")]
    WDE=E_("WDE",8)
    V.add(wd(0,WDE)); V.flush(); clk.tv=E_("TV0",0)
    gcl=[]
    if G1C:
        gcl=[("i",vm,f"buffer_store_dword v72, v15, {WS}, s48 offen sc1",None)]
        for i in range(6): gcl+=[("i",vm,f"buffer_store_dwordx4 v[72:75], v8, {WS}, s20 offen sc1",("GC",i)) if i>=6-E_("NC",6) else ("z",lambda: vm.tags.__setitem__(("GC",5),0)),("0",f"s_add_u32 s20, s20, {BLK*(61 if i==1 else 1)}")]
        plan[E_("QP",70)]+=["v_cmp_eq_u32 s[32:33], 0, v0",f"v_mov_b32 v48, {OOB}","v_mov_b32 v49, s60","v_cndmask_b32 v48, v48, v14, s[32:33]",
                 ("w",vm,("HS",0,1)),("i",vm,f"buffer_store_dword v49, v48, {WS}, s21 offen sc1","QPs")]
        plan[E_("QR",112)]+=[("i",vm,f"buffer_load_dword v12, v14, {WS}, s22 offen sc1","QRp")]
        def qchk():
            vm.wait("QRp"); check_or_poll(k,14,"s22",12); vm.tags["QOK"]=0
        plan[121]+=[("x",qchk)]
    CLW=E_("CLW",WDE)
    V.add([at(E_("WDA",0))]+wd(WDE,CLW)+gcl+wd(CLW,40))
    V2=[at(84)]+stg+res
    def qas(): assert "QOK" in vm.tags
    if G1C: V2+=[at(122),("z",qas)]
    def gate(n): return at(122+2*(n//3))
    for j in range(12): V2+=[gate(j)]+hhload(0,j,j+1)
    for n in range(40,45): V2+=[gate(n-28)]+wdload(vm,n,14)
    for j in range(12): V2+=[gate(32+j)]+hhload(1,j,j+1)
    plan[114]+=sfin(1)
    plan[121]+=epi(2)+rsload(0)+rsload(1)
    for g in range(5): xread(g)
    P.stamp(8)
    GST=[int(x) for x in os.environ.get("GST","0,8,24,40,56,72,88,104,120,132,144,159").split(",")]
    for gi in range(160):
        if gi in GST: P.stamp(1+GST.index(gi),3)
        S.add(plan[gi])
        if os.environ.get('DBG') and gi%8==0: print(gi,clk.t,clk.tv,clk.tl,len(S.q),len(V.q),len(D.q))
        if gi==84:
            D.flush(); V.add(V2)
        q,r=divmod(gi,40); ks=r>>1
        acc=(72 if q&1 else 48)+12*(gi&1); d=RING+4*(gi%8)
        if gi in (80,120): assert not any(isinstance(x,tuple) and x[0]=="i" and isinstance(x[3],tuple) and x[3][0]=="HS" and x[3][1]==q-2 for x in S.q)
        if G1C and gi==39: assert ("GC",5) in vm.tags
        if G1C and gi==79: assert "QPs" in vm.tags
        lg.wait(("X",gi))
        for a in range(3):
            c=acc+4*a
            k(f"{MF} v[{c}:{c+3}], {rr(wreg(3*ks+a))}, v[{d}:{d+3}], {'0' if ks==0 else f'v[{c}:{c+3}]'}")
            if a==0 and gi+5<160:
                clk.t+=1; xread(gi+5)
            else: tick(clk,[D,V,S],first=S)
    print("G1 end: left S",len(S.q),"V",len(V.q),"D",len(D.q))
    S.flush()
    P.stamp(10)
    k("s_nop 7")
    S.add(epi(3,True)); S.flush()
    if STOP<=3:
        k("s_branch FZ_FIN"); return
    AC=[48,72]
    slow=[]
    def mm(s,j,a):
        c=AC[s&1]+4*a
        return f"{MF} v[{c}:{c+3}], {rr(wdreg(5*j+a))}, {rr(wreg(bufn[s]+j))}, {'0' if j==0 else f'v[{c}:{c+3}]'}"
    def chk(s):
        def f():
            c=AC[s&1]
            k(f"v_cmp_u_f32 vcc, v{c}, v{c}\ns_cbranch_vccnz FZ_SL{s}\nFZ_SB{s}:")
            o=[f"FZ_SL{s}:"]+[hhl(s,j) for j in range(12)]+["s_waitcnt vmcnt(0)"]+[mm(s,j,0) for j in range(12)]
            o+=["s_nop 7","s_nop 1",f"v_cmp_u_f32 vcc, v{c}, v{c}",f"s_cbranch_vccz FZ_SO{s}","s_sub_u32 s61, s61, 1",f"s_cbranch_scc0 FZ_SL{s}","s_mov_b32 s61, 0",f"FZ_SO{s}:"]
            o+=[mm(s,j,a) for j in range(12) for a in range(1,5)]+["s_nop 7","s_nop 1",f"s_branch FZ_SB{s}"]
            slow.extend(o)
        return ("x",f)
    def rsred(s):
        a=RSR[s]; b=a+1
        def f():
            V.until(vm,("RS",s)); vm.wait(("RS",s))
            k(f"v_cmp_u_f32 vcc, v{a}, v{b}\ns_cbranch_vccnz FZ_RL{s}\nFZ_RB{s}:")
            slow.extend([f"FZ_RL{s}:",rsl(s),"s_waitcnt vmcnt(0)",f"v_cmp_u_f32 vcc, v{a}, v{b}",f"s_cbranch_vccz FZ_RB{s}","s_sub_u32 s61, s61, 1",
                         f"s_cbranch_scc0 FZ_RL{s}","s_mov_b32 s61, 0",f"s_branch FZ_RB{s}"])
        K=hex(f2u(1.0/640))
        return [("x",f), f"v_permlane16_swap_b32 v{a}, v{b}", f"v_add_f32 v{a}, v{a}, v{b}", f"v_mov_b32 v{b}, v{a}", "s_nop 1",
                f"v_permlane32_swap_b32 v{a}, v{b}", f"v_add_f32 v{a}, v{a}, v{b}", f"v_mov_b32 v{b}, v{a}", "s_nop 1",
                f"v_permlane16_swap_b32 v{a}, v{b}", f"v_mul_f32 v{a}, {K}, v{a}", f"v_mul_f32 v{b}, {K}, v{b}",
                f"v_fma_f32 v{b}, -v{a}, v{a}, v{b}", f"v_max_f32 v{b}, 0, v{b}", f"v_add_f32 v{b}, {hex(f2u(1e-5))}, v{b}",
                f"v_rcp_f32 v{a}, v{b}", "s_nop 0", f"v_mov_b32 v{b}, v{a}"]
    def fin(s,g1,g2,fill=None):
        fill=list(fill or [])
        def gapf(n):
            o=[]
            for _ in range(n): o.append(fill.pop(0) if fill else None)
            return o
        c=AC[s&1]; po=(s&1)*20480; sc=RSR[s]
        o=[chk(s)]+[("i",lg,f"ds_write_b128 v10, v[{c+4*a}:{c+4*a+3}] offset:{po+1024*a}",("pw",s)) for a in range(5)]
        ro=10240*(s>>1)+64*(s&1)
        if s==0: o+=[("w",vm,"RES")]
        o+=gapf(g1)+[("w",lg,("pw",s)),"s_barrier"]
        o+=[("i",lg,f"ds_read_b64_tr_b16 v[96:97], v11 offset:{ro}",None),("i",lg,f"ds_read_b64_tr_b16 v[98:99], v11 offset:{ro+512}",("rr",s))]
        for kq in range(4):
            for h in range(2):
                d=16+8*kq+4*h
                o.append(("i",lg,f"ds_read_b128 v[{d}:{d+3}], v9 offset:{po+5120*kq+1024*h}",("pr",s,kq)))
        o+=gapf(g2)+[("w",lg,("rr",s))]
        for i in range(4): o+=[f"v_lshlrev_b32 v{100+2*i}, 16, v{96+i}", f"v_and_b32 v{101+2*i}, s38, v{96+i}"]
        pa=lambda d,x: f"v_pk_add_f32 v[{d}:{d+1}], v[{d}:{d+1}], v[{x}:{x+1}]"
        o+=[("w",lg,("pr",s,1))]+[pa(16+2*i,24+2*i) for i in range(4)]
        o+=[("w",lg,("pr",s,3))]+[pa(32+2*i,40+2*i) for i in range(4)]+[pa(16+2*i,32+2*i) for i in range(4)]
        o+=[f"v_pk_fma_f32 v[{16+2*i}:{17+2*i}], v[{16+2*i}:{17+2*i}], v[{sc}:{sc+1}], v[{100+2*i}:{101+2*i}]" for i in range(4)]
        o+=[f"v_cvt_pk_bf16_f32 v{96+i}, v{16+2*i}, v{17+2*i}" for i in range(4)]
        OM=os.environ.get("OM","").replace("_"," ")
        o+=[("i",vm,f"buffer_store_dwordx4 v[96:99], v5, s[44:47], s{16+s} offen {OM}",None),("i",vm,f"buffer_store_dwordx2 v[96:97], v6, s[44:47], s{16+s} offen {OM}",None)]
        return o+fill
    p2={i:[] for i in range(240)}
    T0=clk.t
    k('v_add_u32 v7, 61440, v10')
    p2[2]+=rsred(0)
    for g in range(3):
        L.add([("w",vm,("ST",g))]+[("i",lg,f"ds_read_b128 {rr(wdreg(45+5*g+i))}, v{7 if g==2 else 10} offset:{[0,20480,0][g]+1024*i}",("WL",45+5*g+i)) for i in range(5)])
    V.add([("t",T0+E_("S2L",0))]+rsload(2)+rsload(3)+hhload(2)+[("t",T0+E_("S3L",60))])
    for j in range(12): V.add([("t",T0+5*j+5)]+hhload(3,j,j+1))
    for s in range(1,4):
        p2[60*s+3]+=fin(s-1,E_('G2A',6),E_('G2B',6),rsred(s))
    for s in range(4):
        for j in range(12):
            for a in range(5):
                i=60*s+5*j+a
                if i%20==0: P.stamp(1+i//20,4)
                S.add(p2[i])
                if a==0: V.until(vm,("HH",s,j)); vm.wait(("HH",s,j))
                if s==0:
                    if i<45: V.until(vm,("Wd",i)); vm.wait(("Wd",i))
                    else: L.until(lg,("WL",i)); lg.wait(("WL",i))
                k(mm(s,j,a))
                tick(clk,[V,L,S],first=S)
        if s==0: P.stamp(11)
    print("G2 end: left S",len(S.q),"V",len(V.q))
    S.flush()
    P.stamp(12)
    k("s_nop 3")
    S.add(fin(3,0,0)); S.flush()
    if E_("ENDW",0): k("s_waitcnt vmcnt(0)")
    P.stamp(13)
    k(f"s_cmp_eq_u32 s2, 255\ns_cbranch_scc0 FZ_FIN\ns_mov_b32 s32, {WS_FL}")
    post_flag(k,"s32",4,3)
    k("s_branch FZ_FIN")
    k("\n".join(slow))
```

```python
from fzc import *
from fz1 import WAVE_LDS, CB, FEARLY, FPOST, fdma_, JCL
OOB="0x80000000"
E_=lambda n,d: int(os.environ.get(n,str(d)))
def wreg(n):
    if n<12: return ("v",208+4*n)
    if n<28: return ("v",112+4*(n-12))
    b=[224,64,192,32][(n-28)//8]
    return ("a",b+4*((n-28)&7))
def rr(p,n=4): return f"{p[0]}[{p[1]}:{p[1]+n-1}]"
def wload(n):
    ks,a=divmod(n,3)
    so=(27 if a==1 else 24)+(ks>>3)
    return f"buffer_load_dwordx4 {rr(wreg(n))}, {'v7' if a==2 else 'v6'}, {WS}, s{so} offen offset:{512*(ks&7)} sc1"
def g1_pre(k):
    k(f"""
    s_bfe_u32 s20, s2, 0x20001
    s_lshl_b32 s20, s20, 2
    s_bfe_u32 s21, s2, 0x20003
    s_add_u32 s20, s20, s21
    s_and_b32 s21, s2, 1
    s_lshl_b32 s21, s21, 3
    s_lshr_b32 s22, s2, 5
    s_add_u32 s21, s21, s22
    s_lshl_b32 s22, s21, 2
    s_add_u32 s22, s22, s3
    s_mul_i32 s24, s22, 30720
    s_add_u32 s24, s24, {WS_WP}
    s_add_u32 s25, s24, 4096
    s_add_u32 s26, s24, 8192
    s_add_u32 s27, s24, {MS}
    s_add_u32 s28, s25, {MS}
    s_add_u32 s29, s26, {MS}
    s_mov_b32 s30, {FL_F0+160*128}
    s_lshr_b32 s23, s2, 7
    s_lshl_b32 s31, s3, 3
    s_add_u32 s23, s23, s31
    s_lshl_b32 s23, s23, 7
    s_add_u32 s23, s23, {FL_FD}
    s_lshr_b32 s53, s2, 5
    s_mul_i32 s53, s53, 245760
    s_mul_i32 s31, s3, 61440
    s_add_u32 s53, s53, s31
    s_add_u32 s53, s53, {WS_WD}
    s_lshl_b32 s50, s3, 12
    s_mul_i32 s51, s20, 81920
    s_add_u32 s51, s51, s50
    s_add_u32 s51, s51, {WS_HB}
    v_lshrrev_b32 v8, 4, v0
    v_and_b32 v9, 7, v0
    v_lshl_add_u32 v8, v8, 3, v9
    v_lshlrev_b32 v8, 4, v8
    v_bfe_u32 v9, v0, 3, 1
    v_mul_u32_u24 v6, 10240, v9
    v_add_u32 v6, v6, v8
    v_mul_u32_u24 v7, {MS}, v9
    v_add_u32 v8, 20480, v8
    v_add_u32 v7, v7, v8
    """)

def wdreg(n):
    if n<32: return ("a",[160,0,96,128][n//8]+4*(n&7))
    if n<40: return ("v",176+4*(n-32))
    return wreg(n-28)
def wdload(vm,n,va):
    o=[("i",vm,f"buffer_load_dwordx4 {rr(wdreg(n))}, v{va}, {WS}, s53 offen offset:{1024*(n&3)} sc1",("Wd",n))]
    if (n&3)==3: o.append(("0","s_add_u32 s53, s53, 4096"))
    return o
def h0addr(a,b):
    return [f"v_min_u32 v{a}, 39, v0", f"s_lshl_b32 s30, s3, 10", f"v_and_b32 v{b}, 7, v{a}", f"v_lshrrev_b32 v{a}, 3, v{a}",
            f"s_add_u32 s30, s30, {FL_H0}", f"v_lshl_add_u32 v{a}, v{a}, 5, v{b}", f"s_add_u32 s31, s30, {FL_H1-FL_H0}", f"v_lshlrev_b32 v4, 7, v{a}"]
def faaddr(a,b):
    return [f"s_mul_i32 s31, s22, 3", f"v_and_b32 v{a}, 1, v0", f"v_lshl_add_u32 v{a}, v{a}, 1, s31", f"v_lshrrev_b32 v{a}, 3, v{a}",
            f"v_bfe_u32 v{b}, v0, 1, 1", f"v_mul_u32_u24 v{b}, 24, v{b}", f"v_add_lshl_u32 v{a}, v{a}, v{b}, 7"]
def claddr(a):
    return [f"v_and_b32 v{a}, 15, v0", "s_lshl_b32 s52, s3, 4", f"v_add_lshl_u32 v{a}, v{a}, s52, 7"]
def fdaddr():
    return ["v_and_b32 v178, 3, v0","v_lshlrev_b32 v178, 8, v178"]
def g1_addr(a,b):
    return [f"v_lshrrev_b32 v{a}, 3, v0", f"v_bfe_u32 v{b}, v0, 1, 2", f"v_and_b32 v5, 3, v{a}", f"v_xor_b32 v{b}, v{b}, v5",
            f"v_lshlrev_b32 v5, 7, v{a}", f"v_lshl_add_u32 v5, v{b}, 5, v5", f"v_and_b32 v{b}, 1, v0", f"v_lshl_add_u32 v5, v{b}, 4, v5",
            "v_xor_b32 v6, 32, v5"]

def conv(k,P):
    ACC=16; RING=48; QR=176; T=192; FD=12
    GB=4*4160
    k(f"""
    v_cmp_eq_u32 vcc, 0, v0
    v_mov_b32 v11, {OOB}
    v_and_b32 v0, 63, v0
    v_cndmask_b32 v11, v11, 0, vcc
    v_and_b32 v6, 15, v0
    v_lshrrev_b32 v7, 4, v0
    v_mov_b32 v8, 0
    v_mov_b32 v9, 0
    v_lshlrev_b32 v10, 3, v0
    v_add_u32 v10, s46, v10
    ds_write_b64 v10, v[8:9] offset:{GB}
    s_mov_b64 exec, 15
    ds_write_b64 v10, v[8:9]
    s_mov_b64 exec, -1
    v_add_u32 v1, 1, v6
    v_and_b32 v1, 3, v1
    v_sub_u32 v2, v6, v1
    v_lshlrev_b32 v8, 3, v7
    v_sub_u32 v2, v2, v8
    v_add_u32 v2, 25, v2
    v_lshlrev_b32 v2, 1, v2
    v_mul_u32_u24 v1, 4160, v1
    v_add3_u32 v1, v1, v2, s46
    v_sub_u32 v16, v6, v8
    v_add_u32 v16, 25, v16
    v_lshlrev_b32 v16, 1, v16
    v_add_u32 v16, s46, v16
    v_lshlrev_b32 v2, 5, v6
    v_lshl_add_u32 v4, v7, 3, v2
    v_lshlrev_b32 v5, 1, v4
    v_lshl_add_u32 v2, v7, 4, v2
    s_add_u32 s36, s46, {GB+32}
    v_add_u32 v2, s36, v2
    s_and_b32 s37, s35, 1
    s_lshl_b32 s37, s37, 4
    s_lshr_b32 s47, s47, s37
    s_and_b32 s47, s47, 0xffff
    v_sub_u32 v8, v8, v6
    v_subrev_u32 v8, 9, v8
    v_and_b32 v9, 1, v8
    v_lshlrev_b32 v9, 4, v9
    v_lshlrev_b32 v9, v9, s47
    v_ashrrev_i32 v8, 1, v8
    v_mov_b32 v3, s60
    s_lshl_b32 s34, s2, 7
    s_add_u32 s33, s34, {FL_F0}
    s_waitcnt vmcnt({0 if FPOST else 4*(4-FEARLY)})
    s_barrier
    buffer_store_dword v3, v11, {WS}, s33 offen sc1
    """)
    P.stamp(3); P.stamp(1,6)
    if FPOST:
        for c in range(FEARLY,4): fdma_(k,c)
    P.stamp(2,6)
    for m in range(4):
        k(f"v_cmp_eq_u32 vcc, {m}, v8\ns_nop 1\nv_cndmask_b32 v{FD+m}, 0, v9, vcc")
    k(f"""
    v_and_b32 v8, 1, v7
    v_lshlrev_b32 v8, 2, v8
    v_lshrrev_b32 v9, 2, v6
    v_add_u32 v8, v8, v9
    v_mul_u32_u24 v10, 81920, v8
    v_and_b32 v8, 3, v6
    v_lshl_add_u32 v10, v8, 5, v10
    v_lshrrev_b32 v8, 1, v7
    v_lshl_add_u32 v10, v8, 4, v10
    s_lshl_b32 s40, s35, 7
    s_add_u32 s40, s40, {WS_HB}
    s_add_u32 s41, s40, {8*81920}
    s_add_u32 s42, s40, {16*81920}
    s_add_u32 s43, s40, {24*81920}
    s_and_b32 s32, s2, 0xf0
    v_cmp_gt_u32 vcc, 16, v0
    v_mov_b32 v17, s32
    v_mov_b32 v8, 192
    v_cndmask_b32 v17, v8, v17, vcc
    v_add_u32 v17, v17, v0
    v_lshlrev_b32 v17, 7, v17
    s_mov_b32 s32, {FL_F0}
    s_lshl_b32 s36, s35, 12
    s_add_u32 s37, s36, {WS_QT}
    s_lshl_b32 s44, s3, 12
    s_add_u32 s45, s44, {WS_A}
    s_add_u32 s48, s34, {FL_H0}
    s_add_u32 s49, s34, {FL_H1}
    v_lshlrev_b32 v3, 4, v0
    """)
    g1_pre(k)
    vm = Cnt(k,"vmcnt",63); lg = Cnt(k,"lgkmcnt",15)
    loc = {}
    for p in range(4):
        loc[("F",p)] = ("a", 32*p); loc[("G",p)] = ("a", 128+32*p)
    for p in range(4,8):
        loc[("G",p)] = ("v", RING); loc[("F",p)] = ("v", RING+32)
    loc[("F",7)] = ("a", 96)
    def reg(kind, blk, fr, lo=0, n=4):
        f,b = loc[(kind,blk)]
        return f"{f}[{b+4*fr+lo}:{b+4*fr+lo+n-1}]"
    def reads(kind, blk):
        o=[]
        if kind=="G":
            for fr in (range(7,-1,-1)):
                o.append(("i",lg,f"ds_read_b128 {reg('G',blk,fr)}, v2 offset:{64*(8*blk+fr)}", ("G",blk,fr)))
        else:
            for fr in range(8):
                u=8*blk+fr
                if u==0: o.append(("i",lg,f"ds_read_b128 {reg('F',0,0)}, v16", ("F",0,0)))
                else:
                    o.append(("i",lg,f"ds_read_b64 {reg('F',blk,fr,0,2)}, v1 offset:{64*u}", None))
                    o.append(("i",lg,f"ds_read_b64 {reg('F',blk,fr,2,2)}, v1 offset:{64*u+8}", ("F",blk,fr)))
        return o
    clk=Clk(); clk.cv=float(os.environ.get("CVC",clk.cv))
    S=Stream(k,clk); V=Stream(k,clk); L=Stream(k,clk)
    NEWC=E_("NEWC",0); FRD=E_("FRD",0)
    cd,ca=(172,171) if NEWC else (192,3)
    clr=[f"s_mul_i32 s54, s35, 10240", f"v_mov_b32 v{cd}, -1", f"s_add_u32 s54, s54, {WS_HH}", f"v_mov_b32 v{cd+1}, -1",f"v_mov_b32 v{cd+2}, -1",f"v_mov_b32 v{cd+3}, -1"]
    clr0=len(clr)
    for i in range(10):
        clr.append(("i",vm,f"buffer_store_dwordx4 v[{cd}:{cd+3}], v{ca}, {WS}, s54 offen offset:{1024*(i&3)} sc1","CLR"))
        if (i&3)==3: clr.append(("0","s_add_u32 s54, s54, 4096"))
    CLRP=E_("CLRP",0)
    wl=lambda a,b: [("i",vm,wload(n),("W",n)) for n in range(a,b)]
    def frd():
        for p in range(5): S.add(reads("F",p))
        S.flush()
    if NEWC:
        S.add(faaddr(170,171)+([f"s_mov_b32 s54, {FL_CL}"] if JCL else clr[:clr0]+["v_mov_b32 v171, v3"])+["s_mov_b32 s55, s30"]); S.flush()
        P.stamp(3,6)
        if FRD==0:
            k("s_waitcnt vmcnt(0) lgkmcnt(0)"); P.stamp(4,6); frd(); P.stamp(5,6)
        poll(k,17,"s32",18); vm.drained()
    else:
        S.add(faaddr(18,19)); S.flush()
        if CLRP==0:
            S.add(clr); S.flush(); P.stamp(3,6); k(f"s_waitcnt vmcnt({11-FPOST}) lgkmcnt(0)")
        else: k(f"s_waitcnt vmcnt({1-FPOST}) lgkmcnt(0)")
        P.stamp(4,6)
        frd(); P.stamp(5,6)
        poll(k,18,"s30",19)
        P.stamp(7,5); P.stamp(6,6)
        S.add(wl(0,28)); S.flush(); P.stamp(7,6)
        if CLRP==1: S.add(clr); S.flush()
        poll(k,17,"s32",18); vm.drained()
    P.stamp(4); P.stamp(8,6)
    def gd(i): k(f"buffer_load_dwordx4 v3, {WS}, s36 offen offset:{1024*i} sc1 lds"); vm.issue(f"P{i}")
    def ql(t): return ("i",vm,f"buffer_load_dwordx2 v[{QR+2*t}:{QR+2*t+1}], v4, {WS}, s37 offen offset:{512*t} sc1",f"Q{t}")
    k(f"s_add_u32 m0, s46, {GB+512}\ns_nop 0"); gd(0); gd(1)
    k("s_mov_b32 m0, s44\ns_nop 0")
    for i in range(4): k(f"buffer_load_dwordx4 v3, {WS}, s45 offen offset:{1024*i} sc1 lds"); vm.issue("AB")
    S.add([ql(t) for t in range(2)]); S.flush()
    k(f"s_add_u32 m0, s46, {GB+512}\ns_nop 0"); gd(2); gd(3)
    S.add([ql(t) for t in range(2,8)]); S.flush()
    if NEWC and FRD==1:
        k("s_waitcnt lgkmcnt(0)"); frd()
    k("v_mov_b32 v3, s60\ns_waitcnt lgkmcnt(0)"); lg.drained()
    def rdab(t):
        A=T+8*(t&1)
        return [("i",lg,f"ds_read_b128 v[{A}:{A+3}], v5 offset:{1024*t}",None),("i",lg,f"ds_read_b128 v[{A+4}:{A+7}], v5 offset:{8192+1024*t}",("ab",t))]
    def epi(t):
        q=QR+2*t; A=T+8*(t&1); B=A+4; Y=ACC+4*t; C=T+4+2*(t&1)
        o=[("w",vm,f"Q{t}"),("w",lg,("ab",t))]
        for h in range(2):
            o+=[f"v_lshlrev_b32 v8, 16, v{q+h}", f"v_and_b32 v9, s38, v{q+h}",
                f"v_pk_fma_f32 v[{A+2*h}:{A+2*h+1}], v[8:9], v[{A+2*h}:{A+2*h+1}], v[{B+2*h}:{B+2*h+1}]",
                f"v_pk_fma_f32 v[{A+2*h}:{A+2*h+1}], v[{A+2*h}:{A+2*h+1}], v[{Y+2*h}:{Y+2*h+1}], v[8:9]"]
        o+=[f"v_cvt_pk_bf16_f32 v{C}, v{A}, v{A+1}", f"v_cvt_pk_bf16_f32 v{C+1}, v{A+2}, v{A+3}"]
        return o
    def pst(t,sp):
        C=T+4
        return sp+[f"v_permlane16_swap_b32 v{C}, v{C+2}", f"v_permlane16_swap_b32 v{C+1}, v{C+3}",
                ("i",vm,f"buffer_store_dwordx4 v[{C}:{C+3}], v10, {WS}, s{40+t//2} offen sc1",f"H{t}")]
    blocks = [(0,0),(0,1),(1,0),(0,2),(1,1),(2,0),(0,3),(1,2),(2,1),(3,0),
              (1,3),(2,2),(3,1),(2,3),(3,2),(3,3),
              (3,4),(2,4),(1,4),(0,4),(4,3),(4,2),(4,1),(4,0),
              (2,5),(1,5),(0,5),(5,2),(5,1),(5,0),(1,6),(0,6),(6,1),(6,0),(0,7),(7,0)]
    TB=[0]
    for (p,q) in blocks: TB.append(TB[-1]+8+(p==0))
    at=lambda b,d=0: ("t",TB[b]+d)
    L.add(reads("G",1)+[("w",vm,"P1")]+reads("G",2)+reads("G",3)+[at(8),("w",vm,"P2")]+reads("G",4)
          +[at(17)]+reads("F",7)+[at(20)]+reads("G",5)+[at(24)]+reads("F",5)+[at(27),("w",vm,"P3")]+reads("G",6)+[at(30)]+reads("F",6)+[at(32)]+reads("G",7))
    done=set()
    def need(x):
        assert x in done, (x, clk.t, TB[14], len(S.q), S.q[:3])
    if NEWC:
        prb=lambda a,d,t: ("i",vm,f"buffer_load_dword v{d}, v{a}, {WS}, s55 offen sc1",t)
        W1=E_("W1",24)
        if E_("LATE",0):
            V.add([at(14),("z",lambda: need("e3")),"v_mov_b32 v182, v170",at(E_("A1P",17)),prb(182,183,"A2"),at(E_("A1C",20)),("w",vm,"A2"),
              "v_cmp_ne_u32 vcc, s60, v183","s_cmp_lg_u64 vcc, 0",f"s_cselect_b32 s62, {OOB}, 0","s_mov_b32 s63, s62",
              "v_xor_b32 v6, s62, v6","v_xor_b32 v7, s62, v7"]+wl(0,28))
        else: V.add([prb(170,169,"A1")]+([] if (JCL or E_('G1C',0)) else clr[clr0:])+[at(E_("A1B",0)),("w",vm,"A1"),"v_cmp_ne_u32 vcc, s60, v169","s_cmp_lg_u64 vcc, 0",f"s_cselect_b32 s62, {OOB}, 0",
              "v_xor_b32 v6, s62, v6","v_xor_b32 v7, s62, v7"]+wl(0,W1)+[at(14),("z",lambda: need("e3")),"v_mov_b32 v182, v170",at(E_("A2B",14)),prb(182,183,"A2")]+wl(W1,28)
              +[at(21),("w",vm,"A2"),"v_cmp_ne_u32 vcc, s60, v183","s_cmp_lg_u64 vcc, 0",f"s_cselect_b32 s63, {OOB}, 0","s_xor_b32 s52, s62, s63",
              "v_xor_b32 v6, s52, v6","v_xor_b32 v7, s52, v7"])
    V.add([at(21)]+wl(28,36)+[at(25)]+wl(36,44)+[at(28)]+wl(44,52)+[at(31)]+wl(52,60))
    S.add([at(3),("w",vm,"AB"),"s_barrier"] + rdab(0)+rdab(1)+[None]*6+epi(0)+epi(1)+pst(0,[None,None]))
    S.add(rdab(2)+rdab(3)+[at(8)]+epi(2)+[at(10,3)]+epi(3)+[("z",lambda: done.add("e3"))]+pst(2,[None,None]))
    if JCL: S.add(claddr(179))
    S.add(h0addr(8,9)+fdaddr()+rdab(4)+[("i",vm,f"buffer_load_dword v177, v178, {WS}, s23 offen sc1","FDp")])
    S.add([at(E_("H0B",19)),("w",vm,"H2"),"s_barrier",("i",vm,f"buffer_store_dword v3, v11, {WS}, s48 offen sc1",None)])
    S.add([at(24,3)]+epi(4)+rdab(5)+[at(30,3)]+epi(5)+pst(4,[None,None])+rdab(6)+rdab(7)+g1_addr(180,181)[:-1])
    if JCL: S.add([at(E_("CLP",31)),("i",vm,f"buffer_load_dword v184, v179, {WS}, s54 offen sc1","CLp")])
    S.add([at(E_("H0P",33)),("i",vm,f"buffer_load_dword v176, v4, {WS}, s30 offen sc1","H0p"),at(34,3)]+epi(6))
    P.stamp(9,6)
    vm.wait("P0")
    P.stamp(5); P.stamp(10,6)
    if E_("CRS",1): clk.tl=0.0; clk.tv=0.0
    S2=Stream(k,clk); S2.add(reads("G",0)); S2.flush()
    seen=set()
    CST=[int(x) for x in os.environ.get("CST","0,2,4,7,10,13,16,20,24,28,32,35").split(",")]
    for bi,(p,q) in enumerate(blocks):
        if bi in CST: P.stamp(1+CST.index(bi),2)
        assert clk.t==TB[bi]
        Y=ACC+4*(p+q)
        for r in range(8):
            for tag in (("F",p,r),("G",q,7-r)):
                L.until(lg,tag); lg.wait(tag)
            c = f"v[{Y}:{Y+3}]" if (p+q) in seen else "0"
            seen.add(p+q)
            k(f"v_mfma_f32_16x16x32_bf16 v[{Y}:{Y+3}], {reg('F',p,r)}, {reg('G',q,7-r)}, {c}")
            tick(clk,[V,L,S],first=S)
            if r==0 and p==0:
                k(f"v_mfma_f32_16x16x32_bf16 v[{Y}:{Y+3}], v[{FD}:{FD+3}], {reg('G',q,7)}, v[{Y}:{Y+3}]")
                tick(clk,[V,L,S],first=S)
    assert not L.q
    print("conv end: left S",len(S.q),"V",len(V.q))
    S.flush()
    k("s_nop 7")
    S.add(epi(7)+pst(6,["s_nop 1"])); S.flush()
    nleft=sum(1 for x in V.q if x[0]=='i'); V.flush()
    if NEWC:
        k(f"""s_or_b32 s52, s62, s63
        s_cbranch_scc0 FZ_WOK
        v_xor_b32 v6, s63, v6
        v_xor_b32 v7, s63, v7
        s_cmp_eq_u32 s63, 0
        s_cbranch_scc1 FZ_W28""")
        poll(k,182,"s55",183)
        for n in range(28,60): k(wload(n))
        k("FZ_W28:")
        for n in range(28): k(wload(n))
        k("FZ_WOK:")
    k(g1_addr(180,181)[-1])
    P.stamp(6)
    if STOP<=2:
        vm.wait("H6")
        k(f"s_barrier\nbuffer_store_dword v3, v11, {WS}, s49 offen sc1\ns_branch FZ_FIN")
        return
    global NLEFT
    NLEFT=nleft
    k("s_barrier")
    vm.wait("FDp"); check_or_poll(k,178,"s23",177)
    if JCL: vm.wait("CLp"); check_or_poll(k,179,"s54",184)
    vm.wait("H0p"); check_or_poll(k,4,"s30",176)
    k("s_branch FZ_G1")

def join(k,P):
    if STOP<=2: return
    g1_pre(k)
    S=Stream(k)
    S.add(faaddr(4,5)); S.flush()
    poll(k,4,"s30",5,sleep=E_("JSA",0))
    for n in range(60): k(wload(n))
    S.add(fdaddr()); S.flush()
    poll(k,178,"s23",177,sleep=E_("JSD",0))
    if JCL:
        S.add(claddr(179)+[f"s_mov_b32 s54, {FL_CL}"]); S.flush()
        poll(k,179,"s54",177,sleep=E_("JSD",0))
    S.add(h0addr(8,9)+g1_addr(8,9)+[f"v_mov_b32 v11, {OOB}","s_mov_b32 s49, 0"]); S.flush()
    poll(k,4,"s30",176,sleep=E_("JSL",2))
    k("FZ_G1:")
    import fz3
    fz3.g1(k,P,NLEFT)
```
